```python
import torch

def _softmax(x, axis=-1):
    return torch.softmax(x, dim=axis)
def _gelu(x):
    return torch.nn.functional.gelu(x, approximate="tanh")
def _silu(x):
    return torch.nn.functional.silu(x)
def _sigmoid(x):
    return torch.sigmoid(x)
def _layernorm(x, axis=-1, eps=1e-5):
    m = x.mean(dim=axis, keepdim=True)
    v = x.var(dim=axis, keepdim=True, unbiased=False)
    return (x - m) / torch.sqrt(v + eps)
def _scatter_add(tgt, idx, src, axis=0):
    return tgt.clone().index_add_(axis, idx, src)
def _segment_sum(src, seg, n):
    out = torch.zeros((n,) + src.shape[1:], dtype=src.dtype)
    return out.index_add_(0, seg, src)
def _pad(x, pw):
    flat = tuple(v for pair in reversed(pw) for v in pair)
    return torch.nn.functional.pad(x, flat)

kernel_name = 'sequential_preLN__compressed_kv_cla__glu_gated_geglu__decode'

def setup_inputs():

    _w = (lambda a: (lambda t: t.to(torch.bfloat16) if t.is_floating_point() else t)(torch.as_tensor(a)))
    def _A_setup():
        B, H, Sq, Sk, D, M = 1, 32, 1, 8192, 128, 640
        Dc = 4 * D
        return {
            "x": _w((lambda *s: torch.randn(*s, dtype=torch.bfloat16) * 0.05)(B, Sq, M)),
            "c_kv": _w((lambda *s: torch.randn(*s, dtype=torch.bfloat16) * 0.8)(B, Sk, Dc)),
            "w_q": _w((lambda *s: torch.randn(*s, dtype=torch.bfloat16) * 1.6)(M, H, D) * (M ** -0.5)),
            "w_uk": _w((lambda *s: torch.randn(*s, dtype=torch.bfloat16) * 1.6)(Dc, H, D) * (Dc ** -0.5)),
            "w_uv": _w((lambda *s: torch.randn(*s, dtype=torch.bfloat16) * 0.8)(Dc, H, D) * (Dc ** -0.5)),
            "w_o": _w((lambda *s: torch.randn(*s, dtype=torch.bfloat16) * 0.8)(H, D, M) * ((H * D) ** -0.5)),
        }
    _A_in = _A_setup()

    def _B_setup():
        B, S, Dm, Df = 1, 1, 640, 1728
        return {
            "x": _w((lambda *s: torch.randn(*s, dtype=torch.bfloat16) * 0.05)(B, S, Dm)),
            "w_gate": _w((lambda *s: torch.randn(*s, dtype=torch.bfloat16) * 0.4)(Dm, Df) * (Dm ** -0.5)),
            "w_up": _w((lambda *s: torch.randn(*s, dtype=torch.bfloat16) * 0.4)(Dm, Df) * (Dm ** -0.5)),
            "w_down": _w((lambda *s: torch.randn(*s, dtype=torch.bfloat16) * 0.4)(Df, Dm) * (Df ** -0.5)),
        }
    _B_in = _B_setup()

    return {
        "A_x": _A_in["x"],
        "A_c_kv": _A_in["c_kv"],
        "A_w_q": _A_in["w_q"],
        "A_w_uk": _A_in["w_uk"],
        "A_w_uv": _A_in["w_uv"],
        "A_w_o": _A_in["w_o"],
        "B_x": _B_in["x"],
        "B_w_gate": _B_in["w_gate"],
        "B_w_up": _B_in["w_up"],
        "B_w_down": _B_in["w_down"],
    }

def reference(A_x, A_c_kv, A_w_q, A_w_uk, A_w_uv, A_w_o, B_x, B_w_gate, B_w_up, B_w_down):
    def _A_ref(x, c_kv, w_q, w_uk, w_uv, w_o):
        B, Sq, M = x.shape[0], x.shape[1], x.shape[2]
        Sk = c_kv.shape[1]
        H, D = w_q.shape[1], w_q.shape[2]
        q = torch.einsum("bqm,mhd->bhqd", x, w_q)
        k = torch.einsum("bkc,chd->bhkd", c_kv, w_uk)
        v = torch.einsum("bkc,chd->bhkd", c_kv, w_uv)
        scores = torch.einsum("bhqd,bhkd->bhqk", q, k) * (D ** -0.5)
        off = Sk - Sq
        qi = torch.arange(Sq)[:, None]
        kj = torch.arange(Sk)[None, :]
        cmask = kj <= (qi + off)
        scores = torch.where(cmask[None, None], scores, -1e9)
        p = _softmax(scores, axis=-1)
        ctx = torch.einsum("bhqk,bhkd->bhqd", p, v)
        return torch.einsum("bhqd,hdm->bqm", ctx, w_o)

    def _B_ref(x, w_gate, w_up, w_down):
        g = torch.einsum("bsd,df->bsf", x, w_gate)
        u = torch.einsum("bsd,df->bsf", x, w_up)
        h = _gelu(g) * u
        return torch.einsum("bsf,fd->bsd", h, w_down)

    x = A_x
    h = x + _A_ref(_layernorm(x, axis=-1), A_c_kv, A_w_q, A_w_uk, A_w_uv, A_w_o)
    h2 = h + _B_ref(_layernorm(h, axis=-1), B_w_gate, B_w_up, B_w_down)
    return h2
```

```python
import re
TRANS = ('v_exp_f32','v_log_f32','v_rcp_f32','v_rsq_f32','v_sqrt_f32','v_sin_f32','v_cos_f32','v_rcp_iflag_f32')
def regs(tok):
    tok = tok.strip()
    tok = re.sub(r'^-','',tok); tok = re.sub(r'^abs\((.*)\)$',r'\1',tok); tok = tok.strip('|')
    m = re.fullmatch(r'([vsa])\[(\d+):(\d+)\]', tok)
    if m: return {(m.group(1),i) for i in range(int(m.group(2)), int(m.group(3))+1)}
    m = re.fullmatch(r'([vsa])(\d+)', tok)
    if m: return {(m.group(1),int(m.group(2)))}
    if tok in ('vcc','vcc_lo','vcc_hi'): return {('s','vcc')}
    if tok in ('exec','exec_lo','exec_hi'): return {('s','exec')}
    if tok=='m0': return {('s','m0')}
    return set()
def split_ops(s):
    out=[];d=0;cur=''
    for ch in s:
        if ch in '[(': d+=1
        if ch in '])': d-=1
        if ch==',' and d==0: out.append(cur); cur=''
        else: cur+=ch
    if cur.strip(): out.append(cur)
    return [o.strip() for o in out]
class I: pass
def parse(line):
    l = line.split(';')[0].split('//')[0].strip()
    if not l or l.endswith(':') or l.startswith('.'): return None
    m = re.match(r'(\S+)\s*(.*)', l); op=m.group(1); rest=m.group(2)
    ops = split_ops(rest)
    mods=''
    if ops:
        parts = ops[-1].split()
        if len(parts)>1: ops[-1]=parts[0]; mods=' '.join(parts[1:])
    i=I(); i.op=op; i.ops=ops; i.mods=mods; i.text=l
    i.mfma = op.startswith('v_mfma'); i.valu = op.startswith('v_') and not i.mfma
    i.salu = op.startswith('s_'); i.ds = op.startswith('ds_')
    i.vmem = op.startswith(('buffer_','global_','flat_'))
    i.dpp = '_dpp' in op or any(k in l for k in ('row_shr','row_shl','row_ror','quad_perm','row_bcast','row_mirror','row_half_mirror','row_newbcast','wave_sh','wave_ro'))
    i.trans = op.replace('_e32','').replace('_e64','') in TRANS
    i.dot = op.startswith('v_dot')
    i.perml = op.startswith('v_permlane')
    i.rdlane = op.startswith(('v_readlane','v_readfirstlane'))
    i.opsel = i.valu and ('sdwa' in op or 'dst_sel' in l or re.search(r'op_sel:\[[01,]*1\]', l) is not None)
    R=[regs(o) for o in ops]
    w=set(); r=set(); i.srcC=set(); i.srcAB=set(); i.stdata=set(); i.lanesel=set()
    if i.mfma:
        w=R[0]; i.srcAB=R[1]|R[2]; i.srcC=R[3]; r=i.srcAB|i.srcC
        if '32x32x16' in op or '32x32x8' in op: i.p=8
        elif '16x16x32' in op or '16x16x16' in op: i.p=4
        elif '4x4x4' in op: i.p=2
        else: raise Exception('mfma passes? '+op)
    elif i.valu:
        if op.startswith('v_cmp'):
            w=R[0]; r=set().union(*R[1:])
            if 'cmpx' in op: raise Exception('no cmpx')
        elif i.perml or op.startswith('v_swap'):
            w=R[0]|R[1]; r=R[0]|R[1]
        elif '_co_' in op or op.startswith('v_div_scale') or op.startswith('v_mad_u64'):
            w=R[0]|R[1]; r=set().union(*R[2:])
        else:
            w=R[0] if R else set(); r=set().union(*R[1:]) if len(R)>1 else set()
            if op.startswith(('v_fmac','v_dot2c','v_pk_fmac','v_writelane','v_mac')) or i.dpp or i.opsel: r|=R[0]
            if op.startswith('v_div_fmas'): r|={('s','vcc')}
            if op.startswith(('v_readlane','v_writelane')): i.lanesel=R[2]
    elif i.ds:
        if op.startswith(('ds_read','ds_bpermute','ds_permute','ds_swizzle')) or '_rtn' in op:
            w=R[0]; r=set().union(*R[1:]) if len(R)>1 else set()
        else: r=set().union(*R)
    elif i.vmem:
        lds = (' lds' in ' '+l.split(None,1)[1]) or '_lds_' in op
        if 'load' in op and not lds:
            w=R[0]; r=set().union(*R[1:])
        elif 'atomic' in op and 'sc0' in mods and op.startswith('global'):
            w=R[0]; r=set().union(*R[1:])
        else:
            r=set().union(*R) if R else set()
            if lds: r|={('s','m0')}
            if 'store' in op and ('x3' in op or 'x4' in op):
                i.stdata = R[0] if op.startswith('buffer') else R[1]
        i.lds=lds
    elif i.salu:
        if op.startswith(('s_cmp','s_cbranch','s_branch','s_waitcnt','s_nop','s_barrier','s_endpgm','s_sleep','s_setprio','s_bitcmp')):
            r=set().union(*R) if R else set()
        else:
            w=R[0] if R else set(); r=set().union(*R[1:]) if len(R)>1 else set()
            if 'saveexec' in op: w=w|{('s','exec')}
    i.w=w; i.r=r
    return i
def need(p,c):
    n=0
    V=lambda s:{x for x in s if x[0] in 'va'}
    S=lambda s:{x for x in s if x[0]=='s'}
    if p.valu:
        pw=V(p.w); ps=S(p.w)
        if c.rdlane and pw&V(c.r): n=max(n,1)
        if c.valu and c.dpp and pw&V(c.r): n=max(n,2)
        if c.perml and pw&V(c.r): n=max(n,2)
        if c.mfma and pw&c.r: n=max(n,3 if p.dot else 2)
        if c.valu and ps&S(c.r): n=max(n,2)
        if c.valu and c.op.startswith('v_div_fmas') and ('s','vcc') in ps: n=max(n,4)
        if c.valu and ps&c.lanesel: n=max(n,4)
        if c.vmem and ps&S(c.r): n=max(n,5)
        if c.salu and ps&S(c.r): n=max(n,1)
        if p.trans and (c.valu or c.mfma) and not c.trans and pw&V(c.r): n=max(n,1)
        if p.opsel and c.valu and pw&(V(c.r)|V(c.w)): n=max(n,1)
        if p.dot and (c.valu or c.vmem or c.ds):
            if c.op==p.op:
                ab=set().union(*[regs(o) for o in c.ops[1:3]])
                if pw&ab: n=max(n,3)
            elif pw&(V(c.r)|V(c.w)): n=max(n,3)
    if p.mfma:
        t={2:0,4:1,8:2,16:3}[p.p]
        if c.mfma:
            if p.w&c.srcAB: n=max(n,[5,8,12,20][t])
            if p.w&c.srcC:
                if p.w==c.srcC and p.p==c.p: n=max(n,[2,0,0,0][t])
                else: n=max(n,[4,6,10,18][t])
            elif p.w&c.w: n=max(n,[4,6,10,18][t])
        elif c.valu or c.vmem or c.ds:
            if p.w&(c.r|c.w): n=max(n,[5,8,12,20][t])
            if c.valu and p.srcC&c.w: n=max(n,[1,3,7,15][t])
    if p.vmem and p.stdata and (c.w&p.stdata): n=max(n,2)
    if p.salu and ('s','m0') in p.w and ((c.vmem and getattr(c,'lds',False)) or 'addtid' in c.op): n=max(n,1)
    return n
def states(i):
    if i.op=='s_nop': return int(i.ops[0],0)+1
    return 1
def fix(text, verbose=False):
    out=[]; hist=[]
    added=0
    for line in text.split('\n'):
        i=parse(line)
        if i is None:
            out.append(line); continue
        req=0; dist=0
        for p in reversed(hist):
            k=need(p,i)-dist
            if k>req: req=k
            dist+=states(p)
            if dist>=20: break
        while req>0:
            k=min(req,16)
            out.append(f'  s_nop {k-1}'); hist.append(parse(f's_nop {k-1}')); req-=k; added+=1
            if verbose: print('pad',k,'before',i.text)
        out.append(line); hist.append(i)
        if i.op in ('s_branch','s_endpgm'): hist=[]
        hist=hist[-24:]
    return '\n'.join(out)
```

```python
import sys, math, struct
sys.path.insert(0,'exp')
from asmfix import fix
NAME='sequential_preLN__compressed_kv_cla__glu_gated_geglu__decode'
FL=0x1000; Q1F=0x10000; Q1S=0x50000; QA=0x90000; MS=0x98000; LS=0x9C000
CXF=0xA0000; CXS=0xA8000; OP=0xB0000; FP=0xC0000; CC=0x100000; DBG=0x400000
WSN=0x800000; OOB=0x7ff00000; LDS=155648
def fl(x): return '0x%08x'%struct.unpack('<I',struct.pack('<f',x))[0]
DEF=dict(dbg=0, nq='nt', nuk='nt', nc='nt', nuv='nt', no='nt', nf='nt', nfast=24, cwin=16, pf=1)
class G:
    def __init__(s,**kw):
        s.o=[]; s.p=dict(DEF); s.p.update(kw); s.vm=[]; s.lab=0; s.seen=set(); s.ns=0
    def e(s,t):
        for l in t.strip('\n').split('\n'):
            l=l.strip()
            if l: s.o.append(l if l.endswith(':') else '  '+l)
    def v(s,t,tag=None):
        for l in t.strip('\n').split('\n'):
            if l.strip(): s.e(l); s.vm.append(tag); s.seen.add(tag)
    def wv(s,tag=None,extra=''):
        if tag is None: n=0
        else:
            assert tag in s.seen
            if tag not in s.vm: return
            idx=max(i for i,t in enumerate(s.vm) if t==tag); n=len(s.vm)-1-idx
        assert n<64
        s.e(f's_waitcnt vmcnt({n}) {extra}'); s.vm=s.vm[len(s.vm)-n:] if n else []
    def L(s,n): s.lab+=1; return f'L{n}_{s.lab}'
    def st(s,k):
        if s.p['dbg']: s.e(f's_memrealtime s[{64+2*k}:{65+2*k}]\ns_waitcnt lgkmcnt(0)')
    def srd(s,d,p,n): s.e(f's_mov_b32 s{d}, s{p}\ns_mov_b32 s{d+1}, s{p+1}\ns_mov_b32 s{d+2}, {n}\ns_mov_b32 s{d+3}, 0x20000')
    def masks(s,m,t):
        s.e(f'v_and_b32 v{t}, 1, v3\nv_lshlrev_b32 v{t}, 4, v{t}\nv_lshlrev_b32 v{t}, v{t}, v5\nv_bfe_u32 v{t+1}, v3, 1, 2')
        for r in range(4): s.e(f'v_cmp_eq_u32 vcc, {r}, v{t+1}\nv_cndmask_b32 v{m+r}, 0, v{t}, vcc')
    def oob(s,d,cond):
        s.e(f'{cond}\nv_cndmask_b32 v{d}, v6, v{d}, vcc')
    def poll(s,loads,check,lim,name):
        a=s.L(name); b=s.L(name)
        s.e(f's_mov_b32 s33, {lim}\n{a}:'); s.v(loads); s.wv(); s.e(check)
        s.e(f's_cbranch_vccz {b}\ns_sub_u32 s33, s33, 1\ns_cmp_lg_u32 s33, 0\ns_cbranch_scc1 {a}\n{b}:')
    def flagpoll(s,a,d,name):
        s.poll(f'buffer_load_dword v{d}, v{a}, s[8:11], 0 offen sc1', f'v_cmp_ne_u32 vcc, s62, v{d}', BIG, name)
    def chk(s,regs,t):
        r=list(regs); o=''
        cur=r.pop(0)
        while r:
            if len(r)>=2: o+=f'v_max3_u32 v{t}, v{cur}, v{r.pop(0)}, v{r.pop(0)}\n'
            else: o+=f'v_max_u32 v{t}, v{cur}, v{r.pop(0)}\n'
            cur=t
        return o+f'v_cmp_eq_u32 vcc, -1, v{t}'
    def mfma(s,d,a,b,first,ak='v',bk='v'):
        s.e(f'v_mfma_f32_16x16x32_bf16 v[{d}:{d+3}], {ak}[{a}:{a+3}], {bk}[{b}:{b+3}], '+('0' if first else f'v[{d}:{d+3}]'))
    def allg(s,op,x,t):
        s.e(f'v_mov_b32 v{t}, v{x}\nv_permlane32_swap_b32 v{x}, v{t}\n{op} v{x}, v{x}, v{t}\nv_mov_b32 v{t}, v{x}\nv_permlane16_swap_b32 v{x}, v{t}\n{op} v{x}, v{x}, v{t}')
    def dpp(s,op,d,a,b,c): s.e(f'{op}_dpp v{d}, v{a}, v{b} {c} row_mask:0xf bank_mask:0xf')
    def fin(s):
        if s.p['dbg']:
            s.st(15)
            s.e(f's_lshl_b32 s34, s2, 2\ns_add_u32 s34, s34, s3\ns_lshl_b32 s34, s34, 6\ns_add_u32 s34, s34, {DBG}\ns_mov_b64 exec, 1\nv_mov_b32 v1, s34')
            for k in range(16): s.e(f'v_mov_b32 v2, s{64+2*k}\nbuffer_store_dword v2, v1, s[8:11], 0 offen offset:{4*k}')
        s.e('s_endpgm'); s.vm=[]
BIG=1<<15

def pre(g):
    e=g.e
    e('s_cmp_ge_u32 s2, 256\ns_cbranch_scc1 LEND')
    if g.p['dbg']:
        for k in range(16): e(f's_mov_b32 s{64+2*k}, 0')
        e('s_memrealtime s[64:65]')
    e('s_load_dwordx16 s[36:51], s[0:1], 0\ns_load_dwordx2 s[60:61], s[0:1], 96\ns_load_dwordx8 s[52:59], s[0:1], 64')
    if g.p['pf']:
        e('s_getpc_b64 s[6:7]\nLPC:\nv_lshlrev_b32 v7, 7, v0\nv_min_u32 v7, LEND-LPC, v7')
        g.v('global_load_dword v255, v7, s[6:7]')
    e('''v_lshrrev_b32 v7, 6, v0
    v_and_b32 v1, 63, v0
    v_readfirstlane_b32 s3, v7
    v_bfe_u32 v2, v0, 4, 2
    v_and_b32 v3, 15, v0
    v_mov_b32 v5, 0xffff
    v_mov_b32 v6, %d
    v_mov_b32 v8, -1
    v_mov_b32 v9, -1
    v_mov_b32 v10, -1
    v_mov_b32 v11, -1
    s_and_b32 s4, s2, 7
    s_lshr_b32 s5, s2, 3
    s_bfe_u32 s28, s2, 0x20005
    s_lshl_b32 s29, s4, 2
    s_add_u32 s28, s28, s29
    s_and_b32 s29, s5, 3
    s_mov_b32 s10, %d
    s_mov_b32 s11, 0x20000
    s_cmp_ge_u32 s5, 16
    s_cbranch_scc1 LT'''%(OOB,WSN))

def own_flag(g,t):
    g.e(f's_lshl_b32 s34, s2, 7\ns_add_u32 s34, s34, {FL}\nv_mov_b32 v{t}, s34\nv_mov_b32 v{t+1}, s62')
    g.oob(t,'v_cmp_eq_u32 vcc, 0, v0')

def Upart(g):
    e=g.e; p=g.p
    e(f'''s_lshl_b32 s30, s29, 2
    s_add_u32 s30, s30, s3
    v_mul_u32_u24 v12, 20, v1
    s_mul_i32 s31, s30, 80
    v_mad_u32_u24 v13, v2, 20, s31
    s_mov_b32 s31, 81920
    v_mul_lo_u32 v14, v2, s31
    v_lshl_add_u32 v14, v3, 4, v14
    s_mul_i32 s31, s30, {40*8192}
    s_lshl_b32 s34, s28, 8
    s_add_u32 s31, s31, s34
    s_lshl_b32 s32, s30, 18
    s_add_u32 s32, s32, s34
    v_lshrrev_b32 v15, 5, v1
    v_xor_b32 v15, v15, v3
    v_lshlrev_b32 v15, 4, v15
    v_lshl_add_u32 v15, v2, 13, v15
    s_lshl_b32 s34, s28, 13
    s_add_u32 s34, s34, {Q1F}
    s_lshl_b32 s35, s3, 7
    s_add_u32 s35, s35, s34
    v_lshlrev_b32 v16, 9, v3
    v_lshl_add_u32 v16, v2, 5, v16
    v_add_u32 v16, s35, v16
    s_lshl_b32 s35, s30, 9
    s_add_u32 s35, s35, s34
    v_lshlrev_b32 v17, 5, v3
    v_lshl_add_u32 v17, v2, 4, v17
    v_add_u32 v17, s35, v17''')
    g.oob(17,'v_cmp_gt_u32 vcc, 32, v1')
    e(f'''s_lshl_b32 s34, s28, 10
    s_lshl_b32 s35, s30, 6
    s_add_u32 s34, s34, s35
    s_add_u32 s34, s34, {QA}
    v_lshl_add_u32 v18, v3, 2, s34''')
    g.oob(18,'v_cmp_gt_u32 vcc, 16, v1')
    e(f'''s_lshl_b32 s63, s4, 3
    s_add_u32 s63, s63, s5
    s_lshl_b32 s96, s63, 8
    s_add_u32 s96, s96, {OP}
    s_sub_u32 s63, s63, 8
    s_mul_i32 s34, s63, 1280
    s_add_u32 s34, s34, {FP}
    s_cmp_lt_u32 s63, 54
    s_cselect_b32 s35, 1280, 0
    s_cmp_lt_u32 s5, 8
    s_cselect_b32 s96, s96, s34
    s_cselect_b32 s35, 256, s35
    s_mul_i32 s34, s3, 320
    v_lshl_add_u32 v19, v1, 4, s34
    v_cmp_gt_u32 s[26:27], s35, v19
    v_add_u32 v19, s96, v19
    v_cmp_gt_u32 vcc, 20, v1
    s_and_b64 vcc, vcc, s[26:27]
    v_cndmask_b32 v19, v6, v19, vcc
    s_waitcnt lgkmcnt(0)
    s_load_dword s62, s[60:61], 0''')
    g.srd(12,36,1280); g.srd(16,40,640*8192)
    g.v('''buffer_load_dwordx4 v[20:23], v12, s[12:15], 0 offen
    buffer_load_dword v24, v12, s[12:15], 0 offen offset:16
    buffer_load_dwordx4 v[28:31], v13, s[12:15], 0 offen
    buffer_load_dword v25, v13, s[12:15], 0 offen offset:16''','x')
    for i in range(10):
        g.v(f'buffer_load_dwordx4 v[{64+4*i}:{67+4*i}], v14, s[16:19], s31 offen {p["nq"]}',f'q{i}')
        if i<9: e('s_add_u32 s31, s31, 8192')
    e('s_mov_b32 s8, s60\ns_mov_b32 s9, s61'); g.srd(20,42,512*8192)
    g.v('''buffer_store_dword v8, v18, s[8:11], 0 offen sc1
    buffer_store_dwordx4 v[8:11], v19, s[8:11], 0 offen sc1
    buffer_load_dword v26, v16, s[8:11], 0 offen sc1''')
    e('s_lshl_b32 s34, s3, 13')
    for i in range(8):
        e(f's_mov_b32 m0, s34')
        if i: e(f'v_xor_b32 v{104+i}, {32*i}, v15')
        g.v(f'buffer_load_dwordx4 v{104+i if i else 15}, s[20:23], s32 offen {p["nuk"]} lds','uk')
        if i<7: e('s_add_u32 s32, s32, 32768\ns_add_u32 s34, s34, 1024')
    g.masks(32,36)
    g.st(1)
    g.wv('x')
    for i in range(5): e(f'v_lshlrev_b32 v{40+2*i}, 16, v{20+i}\nv_and_b32 v{41+2*i}, 0xffff0000, v{20+i}')
    e('v_add_f32 v36, v40, v41\nv_mul_f32 v37, v40, v40\nv_fmac_f32 v37, v41, v41')
    for i in range(2,10): e(f'v_add_f32 v36, v36, v{40+i}\nv_fmac_f32 v37, v{40+i}, v{40+i}')
    src=[28,29,30,31,25]
    for c,i in zip(['row_ror:8','row_ror:4','row_ror:2','row_ror:1'],range(4)):
        g.dpp('v_add_f32',36,36,36,c); g.dpp('v_add_f32',37,37,37,c)
        e(f'v_lshlrev_b32 v{40+2*i}, 16, v{src[i]}\nv_and_b32 v{41+2*i}, 0xffff0000, v{src[i]}')
    e('v_lshlrev_b32 v48, 16, v25\nv_and_b32 v49, 0xffff0000, v25')
    e('''v_permlane32_swap_b32 v36, v37
    v_add_f32 v36, v36, v37
    v_mov_b32 v37, v36
    v_permlane16_swap_b32 v36, v37
    v_add_f32 v36, v36, v37
    v_mov_b32 v37, v36
    v_permlane32_swap_b32 v36, v37''')
    e(f'''v_mul_f32 v36, {fl(1/640)}, v36
    v_mul_f32 v37, {fl(1/640)}, v37
    v_fma_f32 v37, -v36, v36, v37
    v_max_f32 v37, 0, v37
    v_add_f32 v37, {fl(1e-5)}, v37
    v_rsq_f32 v37, v37
    v_mul_f32 v36, v36, v37''')
    for i in range(10): e(f'v_fma_f32 v{40+i}, v{40+i}, v37, -v36')
    for i in range(10): e(f'v_cvt_pk_bf16_f32 v{40+i}, v{40+i}, v{40+i}')
    for i in range(10):
        for r in range(4): e(f'v_and_b32 v{112+4*i+r}, v{40+i}, v{32+r}')
    e('s_waitcnt lgkmcnt(0)\ns_add_u32 s62, s62, 1')
    own_flag(g,38)
    e('v_mov_b32 v57, s62\nv_mov_b32 v59, s62')
    g.st(2)
    for i in range(10):
        g.wv(f'q{i}'); g.mfma(48+4*(i&1),112+4*i,64+4*i,i<2)
    for r in range(4): e(f'v_add_f32 v{48+r}, v{48+r}, v{52+r}')
    e('v_cvt_pk_bf16_f32 v56, v48, v49\nv_cvt_pk_bf16_f32 v58, v50, v51')
    g.v('buffer_store_dwordx4 v[56:59], v17, s[8:11], 0 offen')
    g.st(3)
    e('s_lshl_b32 s34, s3, 13\nv_xor_b32 v40, v2, v3\nv_lshlrev_b32 v40, 4, v40\nv_lshl_add_u32 v40, v3, 9, v40\nv_add_u32 v40, s34, v40')
    for ks in range(1,4): e(f'v_xor_b32 v{40+ks}, {64*ks}, v40')
    e(f's_lshl_b32 s34, s3, 10\nv_lshlrev_b32 v44, 4, v1\nv_add_u32 v45, s34, v44\nv_add_u32 v45, 0x8000, v45\ns_mov_b32 s35, {Q1S-Q1F}')
    g.wv('uk')
    for t in range(2):
        for ks in range(4): e(f'ds_read_b128 v[{64+16*t+4*ks}:{67+16*t+4*ks}], v{40+ks} offset:{256*t}')
    g.st(4)
    chk='v_xor_b32 v46, s62, v21\nv_xor_b32 v47, s62, v23\nv_xor_b32 v28, s62, v25\nv_xor_b32 v29, s62, v27\nv_or3_b32 v46, v46, v47, v28\nv_or_b32 v46, v46, v29\nv_cmp_ne_u32 vcc, 0, v46'
    ld=lambda so: f'buffer_load_dwordx4 v[20:23], v16, s[8:11], {so} offen sc1\nbuffer_load_dwordx4 v[24:27], v16, s[8:11], {so} offen offset:16 sc1'
    g.poll(ld(0),chk,p['nfast'],'e1f')
    g.v('buffer_store_dwordx4 v[56:59], v17, s[8:11], s35 offen sc1')
    ok=g.L('e1ok'); e(f's_cbranch_vccz {ok}')
    sv=list(g.vm); g.poll(ld('s35'),chk,BIG,'e1s'); g.vm=sv
    e(f'{ok}:')
    e('ds_write2_b32 v45, v20, v22 offset0:0 offset1:1\nds_write2_b32 v45, v24, v26 offset0:2 offset1:3\ns_waitcnt lgkmcnt(0)\ns_barrier')
    for ks in range(4): e(f'ds_read_b128 v[{96+4*ks}:{99+4*ks}], v44 offset:{0x8000+1024*ks}')
    g.v('buffer_store_dword v39, v38, s[8:11], 0 offen sc1')
    g.st(5)
    for ks in range(4):
        e(f's_waitcnt lgkmcnt({3-ks})')
        for t in range(2): g.mfma(48+4*t,96+4*ks,64+16*t+4*ks,ks==0)
    e(f'''v_add_f32 v48, v48, v49
    v_add_f32 v50, v50, v51
    v_add_f32 v52, v52, v53
    v_add_f32 v54, v54, v55
    v_add_f32 v48, v48, v50
    v_add_f32 v52, v52, v54
    v_permlane32_swap_b32 v48, v52
    v_add_f32 v48, v48, v52
    v_mov_b32 v49, v48
    v_permlane16_swap_b32 v48, v49
    v_add_f32 v48, v48, v49
    v_mul_f32 v48, {fl(128**-0.5*math.log2(math.e))}, v48
    v_mov_b32 v49, v48
    v_permlane32_swap_b32 v48, v49
    v_cvt_pk_bf16_f32 v48, v48, v49''')
    g.v('buffer_store_dword v48, v18, s[8:11], 0 offen sc1')
    g.st(6)
    e('s_cmp_ge_u32 s5, 8\ns_cbranch_scc1 LFZ')

RB=0xA000
def Opart(g):
    e=g.e; p=g.p
    g.srd(24,46,32*163840)
    e(f'''s_lshl_b32 s28, s4, 2
    s_add_u32 s28, s28, s3
    s_mul_i32 s31, s28, 163840
    s_mul_i32 s34, s5, 160
    s_add_u32 s31, s31, s34
    s_mul_i32 s34, s3, 20480
    s_add_u32 s34, s34, {RB}
    s_mov_b32 s30, s34
    s_movk_i32 s35, 1120''')
    for i in range(5):
        e(f'v_add_u32 v12, {64*i}, v1\nv_mul_u32_u24 v13, 6554, v12\nv_lshrrev_b32 v13, 16, v13\nv_lshlrev_b32 v12, 4, v12\nv_mad_u32_u24 v{20+i}, v13, s35, v12')
    for i in range(20):
        e('s_mov_b32 m0, s34\ns_add_u32 s34, s34, 1024')
        g.v(f'buffer_load_dwordx4 v{20+i%5}, s[24:27], s31 offen {p["no"]} lds','wo')
        if i%5==4 and i<19: e('s_add_u32 s31, s31, 40960')
    e(f'''v_bfe_u32 v12, v3, 2, 1
    v_lshrrev_b32 v13, 3, v3
    v_lshl_add_u32 v13, v12, 4, v13
    v_lshl_add_u32 v13, v2, 2, v13
    v_mul_u32_u24 v13, 160, v13
    v_and_b32 v12, 3, v3
    v_lshl_add_u32 v13, v12, 3, v13
    v_add_u32 v13, s30, v13
    s_lshl_b32 s34, s3, 5
    s_add_u32 s34, s34, s4
    s_add_u32 s34, s34, 128
    s_lshl_b32 s34, s34, 7
    s_add_u32 s34, s34, {FL}
    v_lshl_add_u32 v14, v12, 10, s34
    s_lshl_b32 s34, s28, 10
    s_add_u32 s34, s34, {CXF}
    v_lshlrev_b32 v15, 8, v3
    v_lshl_add_u32 v15, v2, 4, v15
    v_add_u32 v15, s34, v15
    s_mov_b32 s35, {CXS-CXF}
    s_lshl_b32 s34, s3, 2
    v_lshl_add_u32 v16, v3, 4, s34
    v_lshlrev_b32 v17, 5, v1
    v_lshl_add_u32 v18, v1, 2, s96''')
    g.oob(15,'v_cmp_gt_u32 vcc, 4, v3'); g.oob(18,'v_cmp_gt_u32 vcc, 40, v0')
    g.wv('wo')
    for ks in range(4):
        for ct in range(5):
            for eh in range(2):
                r=64+20*ks+4*ct+2*eh
                e(f'ds_read_b64_tr_b16 v[{r}:{r+1}], v13 offset:{(32*ks+2*eh)*160+32*ct}')
    g.st(7)
    g.flagpoll(14,19,'of')
    e('s_waitcnt lgkmcnt(0)')
    g.st(8)
    ld=lambda so: '\n'.join(f'buffer_load_dwordx4 v[{32+4*k}:{35+4*k}], v15, s[8:11], {so} offen offset:{64*k} sc1' for k in range(4))
    chk=g.chk(range(32,48),19)
    a=g.L('e4'); ok=g.L('e4ok')
    e(f's_mov_b32 s32, {BIG>>3}\n{a}:')
    g.poll(ld(0),chk,p['nfast'],'e4f'); e(f's_cbranch_vccz {ok}')
    g.v(ld('s35')); g.wv(); e(chk)
    e(f's_cbranch_vccz {ok}\ns_sub_u32 s32, s32, 1\ns_cmp_lg_u32 s32, 0\ns_cbranch_scc1 {a}\n{ok}:')
    g.st(9)
    for ks in range(4):
        for ct in range(5): g.mfma(144+4*ct,32+4*ks,64+20*ks+4*ct,ks==0)
    for ct in range(5):
        r=144+4*ct; e(f'v_add_f32 v{r}, v{r}, v{r+1}\nv_add_f32 v{r+2}, v{r+2}, v{r+3}')
    e('s_mov_b64 exec, 0xffff')
    for ct in range(5):
        r=144+4*ct; e(f'v_add_f32 v{r}, v{r}, v{r+2}\nds_write_b32 v16, v{r} offset:{0x9000+256*ct}')
    e('''s_mov_b64 exec, -1
    s_waitcnt lgkmcnt(0)
    s_barrier
    ds_read_b128 v[20:23], v17 offset:0x9000
    ds_read_b128 v[24:27], v17 offset:0x9010
    s_waitcnt lgkmcnt(0)
    v_add_f32 v20, v20, v21
    v_add_f32 v22, v22, v23
    v_add_f32 v24, v24, v25
    v_add_f32 v26, v26, v27
    v_add_f32 v20, v20, v22
    v_add_f32 v24, v24, v26
    v_cvt_pk_bf16_f32 v20, v20, v24''')
    g.v('buffer_store_dword v20, v18, s[8:11], 0 offen sc1')
    g.fin()

def Fpart(g):
    e=g.e; p=g.p
    e('LFZ:\ns_cmp_ge_u32 s63, 54\ns_cbranch_scc1 LZ')
    g.vm=[None]
    g.srd(16,50,640*3456); g.srd(20,52,640*3456); g.srd(24,54,1728*1280)
    e(f'''s_mul_i32 s31, s3, {160*3456}
    s_lshl_b32 s34, s63, 6
    s_add_u32 s31, s31, s34
    s_mul_i32 s34, s3, 20480
    s_add_u32 s34, s34, {RB}
    s_mov_b32 s30, s34
    v_lshrrev_b32 v12, 2, v1
    v_mul_u32_u24 v12, 3456, v12
    v_and_b32 v13, 3, v1
    v_lshl_add_u32 v12, v13, 4, v12''')
    for i in range(10):
        for m in range(2):
            e('s_mov_b32 m0, s34\ns_add_u32 s34, s34, 1024')
            g.v(f'buffer_load_dwordx4 v12, s[{16+4*m}:{19+4*m}], s31 offen {p["nf"]} lds','gu')
        if i<9: e(f's_add_u32 s31, s31, {16*3456}')
    e(f'''s_mul_i32 s31, s63, {32*1280}
    v_mul_u32_u24 v14, 10240, v2
    v_lshl_add_u32 v14, v3, 4, v14
    v_add_u32 v15, 1024, v14
    s_lshl_b32 s34, s3, 8
    v_add_u32 v14, s34, v14''')
    g.oob(15,'v_cmp_gt_u32 vcc, 64, v0')
    for i in range(8):
        g.v(f'buffer_load_dwordx4 v[{160+4*i}:{163+4*i}], v14, s[24:27], s31 offen {p["nf"]}\nbuffer_load_dwordx4 v[{192+4*i}:{195+4*i}], v15, s[24:27], s31 offen {p["nf"]}','wd')
        if i<7: e('s_add_u32 s31, s31, 1280')
    e('s_mul_i32 s34, s3, 320\nv_lshl_add_u32 v16, v2, 4, s34'); g.oob(16,'v_cmp_eq_u32 vcc, 8, v3')
    for ks in range(5): g.v(f'buffer_load_dwordx4 v[{40+4*ks}:{43+4*ks}], v16, s[12:15], 0 offen offset:{64*ks}','x')
    e(f'''v_lshrrev_b32 v17, 1, v2
    v_lshlrev_b32 v17, 11, v17
    v_and_b32 v18, 1, v2
    v_lshl_add_u32 v17, v18, 9, v17
    v_lshrrev_b32 v18, 2, v3
    v_lshl_add_u32 v17, v18, 6, v17
    v_lshl_add_u32 v17, v13, 3, v17
    v_add_u32 v17, s30, v17
    s_lshl_b32 s34, s3, 11
    s_add_u32 s34, s34, {FL}
    v_lshl_add_u32 v18, v3, 7, s34
    s_lshl_b32 s34, s3, 9
    s_add_u32 s34, s34, {OP}
    v_lshl_add_u32 v20, v3, 11, s34
    v_lshl_add_u32 v20, v2, 4, v20
    v_lshrrev_b32 v21, 1, v2
    v_mul_u32_u24 v21, 96, v21
    v_add_u32 v21, v21, v20
    v_mul_u32_u24 v22, 80, v3
    s_lshl_b32 s34, s3, 4
    v_lshl_add_u32 v23, v2, 2, s34
    v_add_u32 v23, v23, v22
    v_and_b32 v24, 7, v3
    v_lshl_add_u32 v24, v2, 3, v24
    v_lshrrev_b32 v25, 3, v3
    v_lshl_add_u32 v24, v25, 5, v24
    v_mul_u32_u24 v24, 80, v24
    s_lshl_b32 s34, s3, 8
    s_add_u32 s34, s34, s96
    v_lshlrev_b32 v26, 4, v3
    v_lshl_add_u32 v26, v2, 3, v26
    s_add_u32 s35, s96, 1024
    v_add_u32 v27, s35, v26
    v_add_u32 v26, s34, v26''')
    g.oob(26,'v_cmp_gt_u32 vcc, 32, v1'); g.oob(27,'v_cmp_gt_u32 vcc, 32, v0')
    g.wv('gu')
    for ks in range(5):
        for t in range(4):
            for eh in range(2):
                r=64+16*ks+4*t+2*eh
                e(f'ds_read_b64_tr_b16 v[{r}:{r+1}], v17 offset:{4096*ks+1024*(t>>1)+256*eh+32*(t&1)}')
    g.wv()
    e('v_mov_b32 v28, 0x3f803f80\nv_cmp_eq_u32 vcc, 12, v3')
    for r in range(40,60): e(f'v_cndmask_b32 v{r}, v{r}, v28, vcc')
    e('v_cmp_gt_u32 s[98:99], 9, v3')
    g.st(7)
    g.flagpoll(18,19,'ff')
    e('s_waitcnt lgkmcnt(0)\ns_mov_b32 exec_lo, 0x00ff00ff\ns_mov_b32 exec_hi, 0x00ff00ff')
    g.st(8)
    ld='\n'.join(f'buffer_load_dwordx4 v[{40+4*k}:{43+4*k}], v{21 if k==2 else 20}, s[8:11], 0 offen offset:{[0,64,128,288,352][k]} sc1' for k in range(5))
    g.poll(ld,g.chk(range(40,60),19),BIG,'e5')
    e('s_mov_b64 exec, -1')
    g.st(9)
    for ks in range(5):
        for t in range(4): g.mfma(224+4*t,40+4*ks,64+16*ks+4*t,ks==0)
        g.mfma(240,40+4*ks,40+4*ks,ks==0)
    for t in range(5):
        r=224+4*t; e(f'v_add_f32 v{r}, v{r}, v{r+1}\nv_add_f32 v{r+2}, v{r+2}, v{r+3}\nv_add_f32 v{r}, v{r}, v{r+2}\nds_write_b32 v23, v{r} offset:{1280*t}')
    e('s_waitcnt lgkmcnt(0)\ns_barrier')
    for w in range(4): e(f'ds_read_b128 v[{80+4*w}:{83+4*w}], v22 offset:{5120+16*w}')
    for w in range(4): e(f'ds_read_b128 v[{64+4*w}:{67+4*w}], v24 offset:{16*w}')
    def red(b):
        e(f'''v_pk_add_f32 v[{b}:{b+1}], v[{b}:{b+1}], v[{b+4}:{b+5}]
        v_pk_add_f32 v[{b+2}:{b+3}], v[{b+2}:{b+3}], v[{b+6}:{b+7}]
        v_pk_add_f32 v[{b+8}:{b+9}], v[{b+8}:{b+9}], v[{b+12}:{b+13}]
        v_pk_add_f32 v[{b+10}:{b+11}], v[{b+10}:{b+11}], v[{b+14}:{b+15}]
        v_pk_add_f32 v[{b}:{b+1}], v[{b}:{b+1}], v[{b+8}:{b+9}]
        v_pk_add_f32 v[{b+2}:{b+3}], v[{b+2}:{b+3}], v[{b+10}:{b+11}]
        v_add_f32 v{b}, v{b}, v{b+1}
        v_add_f32 v{b}, v{b}, v{b+2}''')
    e('s_waitcnt lgkmcnt(4)'); red(80)
    e('v_cndmask_b32 v81, 0, v80, s[98:99]\nv_mov_b32_dpp v82, v80 row_newbcast:12 row_mask:0xf bank_mask:0xf\ns_waitcnt lgkmcnt(0)')
    red(64)
    for c in ['row_ror:8','row_ror:4','row_ror:2','row_ror:1']: g.dpp('v_add_f32',81,81,81,c)
    k1=-2*math.log2(math.e)*math.sqrt(2/math.pi)
    e(f'''v_mul_f32 v82, {fl(1/640)}, v82
    v_mul_f32 v81, {fl(1/640)}, v81
    v_fma_f32 v64, -v82, v67, v64
    v_fma_f32 v81, -v82, v82, v81
    v_max_f32 v81, 0, v81
    v_add_f32 v81, {fl(1e-5)}, v81
    v_rsq_f32 v81, v81
    v_mov_b32 v66, {fl(k1)}
    v_mul_f32 v64, v64, v81
    v_mul_f32 v65, v64, v64
    v_fmac_f32 v66, {fl(k1*0.044715)}, v65
    v_mul_f32 v66, v66, v64
    v_exp_f32 v66, v66
    v_mul_f32_dpp v65, v64, v64 row_ror:8 row_mask:0xf bank_mask:0xf
    v_add_f32 v66, 1.0, v66
    v_rcp_f32 v66, v66
    v_mul_f32 v66, v66, v65
    v_cvt_pk_bf16_f32 v66, v66, v66''')
    for i in range(8):
        for r in range(4): g.dpp('v_and_b32',96+4*i+r,66,32+r,f'row_newbcast:{i}')
        if i: g.mfma(224,92+4*i,156+4*i,i==1); g.mfma(228,92+4*i,188+4*i,i==1)
    g.mfma(224,124,188,0); g.mfma(228,124,220,0)
    e('v_cvt_pk_bf16_f32 v224, v224, v225\nv_cvt_pk_bf16_f32 v225, v226, v227')
    g.v('buffer_store_dwordx2 v[224:225], v26, s[8:11], 0 offen sc1')
    e('v_cvt_pk_bf16_f32 v228, v228, v229\nv_cvt_pk_bf16_f32 v229, v230, v231')
    g.v('buffer_store_dwordx2 v[228:229], v27, s[8:11], 0 offen sc1')
    g.fin()

def Zpart(g):
    e=g.e
    e('LZ:'); g.vm=[None]
    g.srd(24,56,1280)
    e(f'''s_sub_u32 s63, s63, 54
    s_lshl_b32 s30, s63, 2
    s_add_u32 s30, s30, s3
    s_mul_i32 s31, s30, 52
    s_lshr_b32 s31, s31, 8
    s_lshl_b32 s34, s30, 5
    v_lshrrev_b32 v12, 1, v1
    v_and_b32 v13, 1, v1
    v_lshl_add_u32 v13, v13, 4, s34
    v_mul_u32_u24 v14, 1280, v12
    v_add_u32 v14, v14, v13
    v_add_u32 v14, {FP}, v14
    v_add_u32 v15, {32*1280}, v14
    s_mul_i32 s35, s31, 96
    s_add_u32 s35, s35, {OP}
    v_lshl_add_u32 v16, v12, 11, s35
    v_add_u32 v16, v16, v13
    v_lshlrev_b32 v17, 4, v3
    v_lshl_add_u32 v17, v2, 3, v17
    v_add_u32 v17, s34, v17
    v_and_b32 v18, 0x2e, v1''')
    g.oob(17,'v_cmp_eq_u32 vcc, 0, v18'); g.oob(15,'v_cmp_gt_u32 vcc, 44, v1'); g.oob(16,'v_cmp_gt_u32 vcc, 16, v1'); g.oob(13,'v_cmp_gt_u32 vcc, 2, v1')
    g.v('buffer_load_dwordx4 v[40:43], v13, s[12:15], 0 offen')
    e(f'''v_and_b32 v19, 7, v1
    v_lshrrev_b32 v20, 3, v1
    v_lshl_add_u32 v20, v19, 3, v20
    v_add_u32 v20, 64, v20
    s_lshl_b32 s35, s31, 3
    v_add_u32 v19, s35, v19
    v_cmp_gt_u32 vcc, 54, v1
    v_cndmask_b32 v19, v19, v20, vcc
    v_lshlrev_b32 v19, 7, v19
    v_add_u32 v19, {FL}, v19
    v_mov_b32 v22, 0
    v_mov_b32 v23, s62
    s_lshl_b32 s35, s63, 8
    v_add_u32 v21, s35, v0''')
    g.oob(22,'v_cmp_eq_u32 vcc, 0, v21')
    for r in range(4): e(f'v_and_b32 v{36+r}, 0x3f803f80, v{32+r}')
    g.flagpoll(19,20,'zf')
    g.mfma(56,36,40,1)
    g.st(7)
    g.poll('buffer_load_dwordx4 v[44:47], v16, s[8:11], 0 offen sc1',g.chk(range(44,48),20),BIG,'e5z')
    g.mfma(56,36,44,0)
    g.st(8)
    g.poll('buffer_load_dwordx4 v[48:51], v14, s[8:11], 0 offen sc1\nbuffer_load_dwordx4 v[52:55], v15, s[8:11], 0 offen sc1',g.chk(range(48,56),20),BIG,'e6')
    g.st(9)
    g.mfma(56,36,48,0); g.mfma(56,36,52,0)
    for c in ['row_ror:8','row_ror:4','row_ror:2']:
        for r in range(4): g.dpp('v_add_f32',56+r,56+r,56+r,c)
    e('v_cvt_pk_bf16_f32 v56, v56, v57\nv_cvt_pk_bf16_f32 v57, v58, v59')
    g.v('buffer_store_dwordx2 v[56:57], v17, s[24:27], 0 offen\nbuffer_store_dword v23, v22, s[8:11], 0 offen sc1')
    g.fin()

def ff(k): return ((k&7)<<1)|(k>>3)
QL=0x20000; PL=0x24000; ML=0x25000; SL=0x25100
def Tpart(g):
    e=g.e; p=g.p
    e('.p2align 6\nLT:'); g.vm=[None]
    e(f'''s_bfe_u32 s30, s2, 0x30004
    s_lshl_b32 s34, s4, 3
    s_add_u32 s30, s30, s34
    s_and_b32 s31, s5, 1
    s_lshl_b32 s32, s30, 17
    s_lshl_b32 s96, s3, 15
    s_add_u32 s32, s32, s96
    v_lshlrev_b32 v16, 4, v1''')
    for k in range(1,16): e(f'v_xor_b32 v{16+k}, {16*ff(k)}, v16')
    e(f'''s_lshl_b32 s34, s31, 20
    s_lshl_b32 s35, s3, 14
    s_add_u32 s34, s34, s35
    s_lshl_b32 s35, s30, 8
    s_add_u32 s34, s34, s35
    s_add_u32 s34, s34, {CC}
    v_lshl_add_u32 v12, v3, 4, s34
    v_lshl_add_u32 v12, v2, 18, v12
    s_lshl_b32 s63, s28, 2
    s_add_u32 s63, s63, s29
    s_lshl_b32 s34, s63, 8
    s_lshl_b32 s35, s3, 6
    s_add_u32 s34, s34, s35
    s_add_u32 s34, s34, {CXF}
    v_lshl_add_u32 v13, v3, 2, s34
    s_mov_b32 s24, 0x10000
    s_mov_b32 s25, 0x20000
    s_mov_b32 s26, 0x30000
    s_mov_b32 s27, {CXS-CXF}''')
    g.oob(13,'v_cmp_gt_u32 vcc, 16, v1')
    e('s_waitcnt lgkmcnt(0)\ns_load_dword s62, s[60:61], 0')
    g.srd(16,38,8192*1024)
    e('s_mov_b32 s8, s60\ns_mov_b32 s9, s61\ns_mov_b32 s100, s96')
    so=['0','s24','s25','s26']
    def dma(k):
        if k%4==0: e('s_mov_b32 m0, s100\ns_add_u32 s100, s100, 4096')
        if k>=p['cwin']: g.wv(f'c{k-p["cwin"]}')
        g.v(f'buffer_load_dwordx4 v{16+k%16}, s[16:19], s32 offen offset:{1024*(k%4)} {p["nc"]} lds',f'c{k}')
        if k%4==3: e('s_add_u32 s32, s32, 4096')
    n0=min(p['cwin'],8)
    for k in range(n0): dma(k)
    for r in range(4): g.v(f'buffer_store_dwordx4 v[8:11], v12, s[8:11], {so[r]} offen sc1')
    g.v('buffer_store_dword v8, v13, s[8:11], 0 offen sc1\nbuffer_store_dword v8, v13, s[8:11], s27 offen sc1')
    n1=min(p['cwin'],32)
    for k in range(n0,n1): dma(k)
    g.srd(20,44,512*8192)
    g.masks(32,36)
    e(f'''v_and_b32 v4, 7, v3
    v_lshrrev_b32 v36, 3, v3
    v_lshl_or_b32 v4, v4, 1, v36
    v_lshlrev_b32 v36, 1, v2
    v_xor_b32 v36, v36, v4
    v_lshlrev_b32 v36, 4, v36
    v_lshl_add_u32 v36, v3, 10, v36
    v_add_u32 v40, s96, v36
    v_add_u32 v44, {QL}, v36''')
    for m in range(1,4): e(f'v_xor_b32 v{40+m}, {(m>>1)*128+(m&1)*16}, v40\nv_xor_b32 v{44+m}, {(m>>1)*128+(m&1)*16}, v44')
    e(f'''v_lshrrev_b32 v36, 2, v1
    v_and_b32 v37, 7, v36
    v_lshrrev_b32 v38, 5, v1
    v_lshl_or_b32 v37, v37, 1, v38
    v_bfe_u32 v38, v1, 1, 1
    v_xor_b32 v37, v37, v38
    v_lshlrev_b32 v37, 4, v37
    v_lshl_add_u32 v37, v36, 10, v37
    v_and_b32 v38, 1, v1
    v_lshl_add_u32 v37, v38, 3, v37
    s_lshl_b32 s35, s3, 8
    v_add_u32 v48, s35, v37''')
    for ct in range(1,8): e(f'v_xor_b32 v{48+ct}, {32*ct}, v48')
    for ct in range(8): e(f'v_add_u32 v{56+ct}, 0x10000, v{48+ct}')
    e(f'''s_lshl_b32 s35, s31, 2
    s_add_u32 s35, s35, s3
    s_lshl_b32 s97, s35, 7
    s_add_u32 s97, s97, {FL}
    v_lshl_add_u32 v14, v3, 10, s97
    s_lshl_b32 s35, s35, 12
    s_add_u32 s35, s35, {QA}
    v_add_u32 v15, s35, v16
    s_and_b32 s35, s3, 1
    s_lshl_b32 s35, s35, 7
    s_lshr_b32 s97, s3, 1
    s_lshl_b32 s97, s97, 4
    s_or_b32 s35, s35, s97
    v_xor_b32 v68, s35, v16
    s_lshl_b32 s35, s3, 12
    s_add_u32 s35, s35, {QL}
    v_add_u32 v68, s35, v68''')
    for i in range(1,4): e(f'v_xor_b32 v{68+i}, {32*i}, v68')
    e('s_waitcnt lgkmcnt(0)\ns_add_u32 s62, s62, 1')
    own_flag(g,38)
    g.st(1)
    for k in range(n1,32): dma(k)
    g.wv('c15')
    for m in range(16): e(f'ds_read_b128 v[{128+4*m}:{131+4*m}], v{40+(m&3)} offset:{256*(m>>2)}')
    g.wv('c31')
    g.st(2)
    for m in range(16): e(f'ds_read_b128 v[{192+4*m}:{195+4*m}], v{40+(m&3)} offset:{16384+256*(m>>2)}')
    e('s_barrier')
    g.v('buffer_store_dword v39, v38, s[8:11], 0 offen sc1')
    for ks in range(4):
        for ct in range(8):
            for t in range(2):
                r=32*ks+4*ct+2*t
                e(f'ds_read_b64_tr_b16 a[{r}:{r+1}], v{48+ct+8*(ks>>1)} offset:{(32*(ks&1)+16*t)*1024}')
    g.flagpoll(14,7,'tf')
    g.st(3)
    ld='\n'.join(f'buffer_load_dwordx4 v[{72+4*i}:{75+4*i}], v15, s[8:11], 0 offen offset:{1024*i} sc1' for i in range(4))
    g.poll(ld,g.chk(range(72,88),7),BIG,'e2')
    for i in range(4): e(f'ds_write_b128 v{68+i}, v[{72+4*i}:{75+4*i}] offset:{1024*i}')
    e(f'''s_lshl_b32 s34, s29, 2
    s_add_u32 s34, s34, s3
    s_lshl_b32 s34, s34, 18
    s_lshl_b32 s35, s28, 8
    s_add_u32 s34, s34, s35
    v_lshlrev_b32 v17, 4, v3
    v_lshl_add_u32 v18, v2, 13, v17''')
    e('s_waitcnt lgkmcnt(0)\ns_barrier')
    g.st(4)
    for m in range(16): e(f'ds_read_b128 v[{64+4*m}:{67+4*m}], v{44+(m&3)} offset:{256*(m>>2)}')
    for i in range(8):
        g.v(f'buffer_load_dwordx4 a[{128+4*i}:{131+4*i}], v18, s[20:23], s34 offen {p["nuv"]}','uv')
        if i<7: e('s_add_u32 s34, s34, 32768')
    fill=f'''s_lshl_b32 s34, s31, 6
    s_add_u32 s34, s34, s30
    s_lshl_b32 s34, s34, 7
    s_add_u32 s34, s34, {MS}
    v_lshl_add_u32 v19, v3, 3, s34
    v_cmp_gt_u32 vcc, 16, v0
    v_cndmask_b32 v19, v6, v19, vcc
    s_lshl_b32 s34, s3, 2
    v_add_u32 v20, {ML}, v17
    v_add_u32 v21, s34, v20
    v_add_u32 v22, {PL}, v16
    s_lshl_b32 s34, s3, 10
    v_add_u32 v23, s34, v22
    v_mov_b32 v25, s62
    v_mov_b32 v27, s62
    v_mov_b32 v28, 0x3f803f80
    v_mov_b32 v29, 0x3f803f80
    v_mov_b32 v30, 0x3f803f80
    v_mov_b32 v31, 0x3f803f80
    s_lshr_b32 s34, s28, 4
    s_lshl_b32 s34, s34, 2
    s_add_u32 s34, s34, s3
    s_lshl_b32 s34, s34, 11
    s_and_b32 s35, s28, 15
    s_lshl_b32 s35, s35, 3
    s_add_u32 s34, s34, s35
    s_add_u32 s34, s34, {MS}
    v_and_b32 v36, 3, v3
    v_lshl_add_u32 v37, v2, 2, v36
    v_lshl_add_u32 v14, v37, 7, s34
    s_lshl_b32 s34, s63, 14
    s_lshl_b32 s35, s3, 12
    s_add_u32 s34, s34, s35
    s_add_u32 s34, s34, {CC}
    v_lshl_add_u32 v15, v2, 10, s34
    v_add_u32 v15, v15, v17
    s_mov_b32 s97, {LS-MS}'''.split('\n')
    for m in range(16):
        e(f's_waitcnt lgkmcnt({15-m})')
        for t in range(2): g.mfma(48+4*t,128+64*t+4*m,64+4*m,m==0)
        for _ in range(3):
            if fill: e(fill.pop(0))
    assert not fill
    e('v_max3_f32 v24, v48, v49, v50\nv_max3_f32 v36, v51, v52, v53\nv_max3_f32 v24, v24, v54, v55\nv_max_f32 v24, v24, v36')
    g.allg('v_max_f32',24,36)
    e('ds_write_b32 v21, v24\ns_waitcnt lgkmcnt(0)\ns_barrier\nds_read_b128 v[56:59], v20\ns_waitcnt lgkmcnt(0)\nv_max3_f32 v24, v56, v57, v58\nv_max_f32 v24, v24, v59')
    g.v('buffer_store_dwordx2 v[24:25], v19, s[8:11], 0 offen sc1')
    for r in range(8): e(f'v_sub_f32 v{48+r}, v{48+r}, v24')
    for r in range(8): e(f'v_exp_f32 v{48+r}, v{48+r}')
    for r in range(4): e(f'v_cvt_pk_bf16_f32 v{56+r}, v{48+2*r}, v{49+2*r}')
    e('ds_write_b128 v23, v[56:59]\ns_waitcnt lgkmcnt(0)\ns_barrier')
    g.st(5)
    for ks in range(4): e(f'ds_read_b128 v[{96+4*ks}:{99+4*ks}], v22 offset:{1024*ks}')
    fill=f'''v_and_b32 v36, 1, v2
    s_and_b32 s34, s3, 1
    s_lshl_b32 s34, s34, 7
    v_lshl_or_b32 v37, v36, 5, s34
    v_xor_b32 v37, v37, v17
    v_lshl_add_u32 v37, v2, 8, v37
    s_lshl_b32 s34, s3, 13
    v_add_u32 v40, s34, v37
    v_xor_b32 v41, 64, v40
    v_lshrrev_b32 v37, 2, v3
    v_lshl_add_u32 v36, v37, 1, v36
    v_lshlrev_b32 v36, 5, v36
    s_lshl_b32 s34, s3, 6
    v_xor_b32 v36, s34, v36
    v_and_b32 v38, 3, v3
    v_lshl_add_u32 v36, v38, 3, v36
    v_lshl_add_u32 v36, v2, 8, v36
    v_lshl_add_u32 v42, v37, 12, v36
    v_xor_b32 v43, 32, v42
    s_lshl_b32 s34, s3, 8
    s_add_u32 s34, s34, {SL}
    v_and_b32 v36, 1, v2
    v_lshl_add_u32 v36, v36, 3, v17
    v_add_u32 v44, s34, v36
    v_lshlrev_b32 v45, 8, v38
    v_lshl_add_u32 v45, v2, 4, v45
    v_add_u32 v45, {SL}, v45
    s_lshl_b32 s34, s3, 2
    s_add_u32 s34, s34, {SL+1024}
    v_mov_b32 v46, s34
    v_mov_b32 v47, {SL+1024}'''.split('\n')
    for ks in range(4):
        e(f's_waitcnt lgkmcnt({3-ks})')
        g.mfma(112,28,96+4*ks,ks==0)
        for ct in range(8):
            g.mfma(64+4*ct,96+4*ks,32*ks+4*ct,ks==0,bk='a')
            for _ in range(2):
                if fill: e(fill.pop(0))
    assert not fill
    e('v_mov_b32 v26, v112')
    for r in range(4):
        for c in range(4): e(f'v_cvt_pk_bf16_f32 v{128+4*r+c}, v{64+8*c+r}, v{68+8*c+r}')
        g.v(f'buffer_store_dwordx4 v[{128+4*r}:{131+4*r}], v12, s[8:11], {so[r]} offen sc1')
        if r==0: g.v('buffer_store_dwordx2 v[26:27], v19, s[8:11], s97 offen sc1')
    g.st(6)
    g.wv('uv')
    for i in range(8): e(f'ds_write_b128 v{40+(i>>2)}, a[{128+4*i}:{131+4*i}] offset:{1024*i}')
    e('s_waitcnt lgkmcnt(0)\ns_barrier')
    for ks in range(4):
        for dt in range(2):
            for eh in range(2):
                r=160+8*ks+4*dt+2*eh
                e(f'ds_read_b64_tr_b16 v[{r}:{r+1}], v{42+dt} offset:{16384*eh+1024*ks}')
    g.poll('buffer_load_dwordx2 v[48:49], v14, s[8:11], 0 offen sc1','v_cmp_ne_u32 vcc, s62, v49',BIG,'e3s')
    g.st(7)
    a=g.L('e3'); b=g.L('e3')
    e(f's_mov_b32 s33, {BIG}\n{a}:')
    for i in range(4): g.v(f'buffer_load_dwordx4 v[{64+4*i}:{67+4*i}], v15, s[8:11], 0 offen offset:{256*i} sc1')
    g.v('buffer_load_dwordx2 v[50:51], v14, s[8:11], s97 offen sc1')
    g.dpp('v_max_f32',52,48,48,'quad_perm:[1,0,3,2]'); g.dpp('v_max_f32',52,52,52,'quad_perm:[2,3,0,1]')
    g.allg('v_max_f32',52,36)
    e('v_sub_f32 v53, v48, v52\nv_exp_f32 v53, v53\nv_cvt_pk_bf16_f32 v53, v53, v53')
    for i in range(4):
        for r in range(4): g.dpp('v_and_b32',80+4*i+r,53,32+r,f'row_newbcast:{i}')
    e('v_and_b32 v53, 0xffff0000, v53')
    g.wv()
    e('v_cmp_ne_u32 s[98:99], s62, v51\n'+g.chk(range(64,80),7)+'\ns_or_b64 vcc, vcc, s[98:99]')
    e(f's_cbranch_vccz {b}\ns_sub_u32 s33, s33, 1\ns_cmp_lg_u32 s33, 0\ns_cbranch_scc1 {a}\n{b}:')
    g.st(8)
    for i in range(4): g.mfma(56+4*(i&1),80+4*i,64+4*i,i<2)
    e('v_mul_f32 v53, v53, v50')
    g.dpp('v_add_f32',53,53,53,'quad_perm:[1,0,3,2]'); g.dpp('v_add_f32',53,53,53,'quad_perm:[2,3,0,1]')
    g.allg('v_add_f32',53,36)
    e('''ds_write2_b32 v46, v52, v53 offset0:0 offset1:4
    v_pk_add_f32 v[56:57], v[56:57], v[60:61]
    v_pk_add_f32 v[58:59], v[58:59], v[62:63]
    v_cvt_pk_bf16_f32 v56, v56, v57
    v_cvt_pk_bf16_f32 v57, v58, v59
    ds_write_b64 v44, v[56:57]
    s_waitcnt lgkmcnt(0)
    s_barrier''')
    for ks in range(4): e(f'ds_read_b128 v[{64+4*ks}:{67+4*ks}], v45 offset:{64*ks}')
    e('ds_read_b128 v[80:83], v47\nds_read_b128 v[84:87], v47 offset:16')
    for ks in range(4):
        e(f's_waitcnt lgkmcnt({5-ks})')
        for dt in range(2): g.mfma(56+4*dt,64+4*ks,160+8*ks+4*dt,ks==0)
    e('s_waitcnt lgkmcnt(0)\nv_max3_f32 v52, v80, v81, v82\nv_max_f32 v52, v52, v83')
    for r in range(4): e(f'v_sub_f32 v{80+r}, v{80+r}, v52')
    for r in range(4): e(f'v_exp_f32 v{80+r}, v{80+r}')
    e('v_mul_f32 v53, v80, v84\nv_fmac_f32 v53, v81, v85\nv_fmac_f32 v53, v82, v86\nv_fmac_f32 v53, v83, v87\nv_rcp_f32 v53, v53')
    e('v_mul_f32 v54, v80, v56\nv_mul_f32 v55, v80, v60')
    for r in range(1,4): e(f'v_fmac_f32 v54, v{80+r}, v{56+r}\nv_fmac_f32 v55, v{80+r}, v{60+r}')
    e('v_mul_f32 v54, v54, v53\nv_mul_f32 v55, v55, v53\nv_cvt_pk_bf16_f32 v54, v54, v55')
    g.v('buffer_store_dword v54, v13, s[8:11], 0 offen\nbuffer_store_dword v54, v13, s[8:11], s27 offen sc1')
    g.fin()

def gen(**kw):
    g=G(**kw)
    pre(g); Upart(g); Opart(g); Fpart(g); Zpart(g); Tpart(g)
    body=fix('\n'.join(g.o))
    ref=open(f'cdna_kernels/{NAME}.s.ref').read()
    a,b=ref.split(f'{NAME}_kernel:\n'); b=b[b.index('s_endpgm'):]
    a=a.replace('grid=(3,1,1) block=(256,1,1) lds=0',f'grid=(256,1,1) block=(256,1,1) lds={LDS}')
    b=b.replace('next_free_vgpr 256','next_free_vgpr 512')
    return a+f'{NAME}_kernel:\n'+body+'\nLEND:\n'+b
if __name__=='__main__':
    kw={}
    for x in sys.argv[2:]:
        k,v=x.split('='); kw[k]=int(v) if v.lstrip('-').isdigit() else v
    open(sys.argv[1],'w').write(gen(**kw))
```

```python
import sys, math, struct
sys.path.insert(0,'exp')
from asmfix import fix
NAME='sequential_preLN__compressed_kv_cla__glu_gated_geglu__decode'
FL=0x1000; FL2=0x300000; Q1F=0x100000; Q1S=0x180000; QA=0x90000; MS=0x98000; LS=0x9C000
CXF=0xA0000; CXS=0xA8000; OP=0xE0000; FP=0xC0000; CC=0x200000; DBG=0x400000
WSN=0x800000; OOB=0x7ff00000; LDS=155648
def fl(x): return '0x%08x'%struct.unpack('<I',struct.pack('<f',x))[0]
DEF=dict(dbg=0, nq='nt', nuk='nt', nc='nt', nuv='nt', no='nt', nf='nt', nfast=64, cwin=16, tpo=3, uvat=1, fi=24, gat=28, d0=1, d1=0, dq=3, d2=2, tf=1, x='', pf=32, opre=0, fpre=0, hu=0, dty=0, dry='x', bq=1, fh=1, qm=0, orev=0, frev=0, tw=0, tfl=1, fw=0, ow=0, uk0=0, uk1=8, ufl=0, rev=1, pfl=3, ms=0, oc=1, sw=0, me=0, pv=0, pu=1, ns=10, ua=0, puh=0, g1=0, il=31, po=0, pff=0, csc='sc1')
class G:
    def __init__(s,**kw):
        s.o=[]; s.p=dict(DEF); s.p.update(kw); s.vm=[]; s.lab=0; s.seen=set(); s.ns=0; s.tail=[]
    def e(s,t):
        for l in t.strip('\n').split('\n'):
            l=l.strip()
            if l: s.o.append(l if l.endswith(':') else '  '+l)
    def v(s,t,tag=None):
        for l in t.strip('\n').split('\n'):
            if l.strip(): s.e(l); s.vm.append(tag); s.seen.add(tag)
    def wv(s,tag=None,extra=''):
        if tag is None: n=0
        else:
            assert tag in s.seen
            if tag not in s.vm: return
            idx=max(i for i,t in enumerate(s.vm) if t==tag); s.vm=s.vm[idx+1:]
            n=sum(1 for t in s.vm if not (t or '').startswith('?'))
        assert n<64
        s.e(f's_waitcnt vmcnt({n}) {extra}')
        if n==0: s.vm=[]
    def w0(s,t,tag,wait=None):
        a=s.L('w'); s.e(f's_cmp_lg_u32 s3, 0\ns_cbranch_scc1 {a}')
        if wait: sv=list(s.vm); s.wv(wait); s.vm=sv
        s.v(t,tag); s.e(f'{a}:')
    def dry0(s,n):
        if n in s.p['dry']: s.e(f's_mov_b32 s7, 1\ns_branch LD{n}a\nLD{n}r:\ns_nop 7\ns_nop 7')
    def dry1(s,n):
        if n in s.p['dry']: s.e(f'LD{n}a:')
    def dry2(s,n):
        if n in s.p['dry']: s.e(f's_cmp_eq_u32 s7, 1\ns_mov_b32 s7, 0\ns_cbranch_scc1 LD{n}r')
    def L(s,n): s.lab+=1; return f'L{n}_{s.lab}'
    def st(s,k):
        if s.p.get('probe')==f'{s.role}{k}': s.e('s_memrealtime s[68:69]\ns_waitcnt lgkmcnt(0)\ns_sub_u32 s70, s68, s64\ns_add_u32 s70, s70, 1500')
        if s.p['dbg'] and (k==15 or '%x'%k in s.p.get('s'+s.role,'123456789abcde')): s.e(f's_memrealtime s[{64+2*k}:{65+2*k}]\ns_waitcnt lgkmcnt(0)')
    def srd(s,d,p,n): s.e(f's_mov_b32 s{d}, s{p}\ns_mov_b32 s{d+1}, s{p+1}\ns_mov_b32 s{d+2}, {n}\ns_mov_b32 s{d+3}, 0x20000')
    def masks(s,m,t):
        s.e(f'v_and_b32 v{t}, 1, v3\nv_lshlrev_b32 v{t}, 4, v{t}\nv_lshlrev_b32 v{t}, v{t}, v5\nv_bfe_u32 v{t+1}, v3, 1, 2')
        for r in range(4): s.e(f'v_cmp_eq_u32 vcc, {r}, v{t+1}\nv_cndmask_b32 v{m+r}, 0, v{t}, vcc')
    def oob(s,d,cond):
        s.e(f'{cond}\nv_cndmask_b32 v{d}, v6, v{d}, vcc')
    def poll(s,loads,check,lim,name,ex=None):
        a=s.L(name); b=ex or s.L(name)
        s.e(f's_mov_b32 s33, {lim}\n{a}:\ns_sub_u32 s33, s33, 1\ns_cbranch_scc1 {b}'); s.v(loads); s.wv(); s.e(check)
        s.e(f's_cbranch_vccnz {a}'+('' if ex else f'\n{b}:'))
    def dual(s,ld,chk,n):
        a=s.L(n); ok=s.L(n); sl=s.L(n)
        s.e(f's_mov_b32 s32, {BIG>>3}\n{a}:')
        s.poll(ld(0),chk,s.p['nfast'],n,sl); s.e(f'{ok}:')
        s.tail.append(f'{sl}:\n'+ld('s35')+'\ns_waitcnt vmcnt(0)\n'+chk+f'\ns_cbranch_vccz {ok}\ns_sub_u32 s32, s32, 1\ns_cbranch_scc0 {a}\ns_branch {ok}')
    def flagpoll(s,a,d,name):
        s.poll(f'buffer_load_dword v{d}, v{a}, s[8:11], 0 offen sc1', f'v_cmp_ne_u32 vcc, s62, v{d}', BIG, name)
    def flagpre(s,a,d): s.v(f'buffer_load_dword v{d}, v{a}, s[8:11], 0 offen sc1','pfl')
    def flagchk(s,a,d,name):
        l=s.L(name); s.wv(); s.e(f'v_cmp_ne_u32 vcc, s62, v{d}\ns_cbranch_vccz {l}'); s.flagpoll(a,d,name); s.e(f'{l}:')
    def chk(s,regs,t):
        r=list(regs); o=''
        cur=r.pop(0)
        while r:
            if len(r)>=2: o+=f'v_max3_u32 v{t}, v{cur}, v{r.pop(0)}, v{r.pop(0)}\n'
            else: o+=f'v_max_u32 v{t}, v{cur}, v{r.pop(0)}\n'
            cur=t
        return o+f'v_cmp_eq_u32 vcc, -1, v{t}'
    def mfma(s,d,a,b,first,ak='v',bk='v'):
        s.e(f'v_mfma_f32_16x16x32_bf16 v[{d}:{d+3}], {ak}[{a}:{a+3}], {bk}[{b}:{b+3}], '+('0' if first else f'v[{d}:{d+3}]'))
    def allg(s,op,x,t):
        s.e(f'v_mov_b32 v{t}, v{x}\nv_permlane32_swap_b32 v{x}, v{t}\n{op} v{x}, v{x}, v{t}\nv_mov_b32 v{t}, v{x}\nv_permlane16_swap_b32 v{x}, v{t}\n{op} v{x}, v{x}, v{t}')
    def dpp(s,op,d,a,b,c): s.e(f'{op}_dpp v{d}, v{a}, v{b} {c} row_mask:0xf bank_mask:0xf')
    def fin(s):
        if s.p.get('probe'): s.st(15); s.p['spin']='s70'
        if s.p.get('spin'):
            a=s.L('sp'); s.e(f's_mov_b32 s33, 100000\n{a}:\ns_memrealtime s[66:67]\ns_waitcnt lgkmcnt(0)\ns_sub_u32 s66, s66, s64\ns_sub_u32 s33, s33, 1\ns_cselect_b32 s66, -1, s66\ns_cmp_lt_u32 s66, {s.p["spin"]}\ns_cbranch_scc1 {a}')
        if s.p['dbg']:
            s.st(15)
            s.e(f's_lshl_b32 s34, s2, 2\ns_add_u32 s34, s34, s3\ns_lshl_b32 s34, s34, 6\ns_add_u32 s34, s34, {DBG}\ns_mov_b64 exec, 1\nv_mov_b32 v1, s34')
            for k in range(16): s.e(f'v_mov_b32 v2, s{64+2*k}\nbuffer_store_dword v2, v1, s[8:11], 0 offen offset:{4*k}')
        s.e('s_endpgm'); s.vm=[]
        while s.tail: s.e(s.tail.pop())
BIG=1<<15
def mf(d,a,b,c): return f'v_mfma_f32_16x16x32_bf16 v[{d}:{d+3}], v[{a}:{a+3}], v[{b}:{b+3}], '+('0' if c is None else f'v[{c}:{c+3}]')
def ilv(m,c,n):
    c=c.split('\n'); o=[]
    for x in m: o.append(x); o+=c[:n]; c=c[n:]
    return '\n'.join(o+c)

def pre(g):
    e=g.e
    e('s_cmp_ge_u32 s2, 256\ns_cbranch_scc1 LEND')
    if g.p['dbg'] or g.p.get('spin') or g.p.get('probe'):
        for k in range(16): e(f's_mov_b32 s{64+2*k}, 0')
        e('s_memrealtime s[64:65]')
    e('s_load_dwordx16 s[36:51], s[0:1], 0\ns_load_dwordx2 s[60:61], s[0:1], 96\ns_load_dwordx8 s[52:59], s[0:1], 64')
    if g.p['pf']:
        if g.p['pf']>1: e(f's_cmp_ge_u32 s2, {g.p["pf"]}\ns_cbranch_scc1 LNP')
        e('s_getpc_b64 s[6:7]\nLPC:\nv_lshlrev_b32 v7, 7, v0\nv_min_u32 v7, LEND-LPC, v7')
        g.v('global_load_dword v255, v7, s[6:7]')
        e('LNP:')
    e('''v_lshrrev_b32 v7, 6, v0
    v_and_b32 v1, 63, v0
    v_readfirstlane_b32 s3, v7
    v_bfe_u32 v2, v0, 4, 2
    v_and_b32 v3, 15, v0
    v_mov_b32 v5, 0xffff
    v_mov_b32 v6, %d
    v_mov_b32 v8, -1
    v_mov_b32 v9, -1
    v_mov_b32 v10, -1
    v_mov_b32 v11, -1
    s_and_b32 s4, s2, 7
    s_lshr_b32 s5, s2, 3
    s_bfe_u32 s28, s2, 0x20005
    s_lshl_b32 s29, s4, 2
    s_add_u32 s28, s28, s29
    s_and_b32 s29, s5, 3
    s_mov_b32 s10, %d
    s_mov_b32 s11, 0x20000
    s_cmp_ge_u32 s5, 16
    %s'''%(OOB,WSN,'s_cbranch_scc0 LU' if g.p['tf'] else 's_cbranch_scc1 LT'))

def own_flag(g,t):
    g.e(f's_lshl_b32 s34, s2, 7\ns_add_u32 s34, s34, {FL}\nv_mov_b32 v{t}, s34\nv_mov_b32 v{t+1}, s62')
    g.oob(t,'v_cmp_eq_u32 vcc, 0, v0')

HS=4096+256
def hu_addr(g,t):
    g.e(f's_mul_i32 s34, s2, {HS}\ns_add_u32 s34, s34, {FL2}\nv_mov_b32 v{t}, s34\nv_mov_b32 v{t+1}, s62')
    g.oob(t,'v_cmp_eq_u32 vcc, 0, v0')
def hupoll(g,a,d,n,name):
    l=g.L('h'); g.e(f'v_mul_u32_u24 v{a}, {HS}, v{a}\ns_mov_b32 s97, {FL2}\ns_cmp_lg_u32 s3, 0\ns_cbranch_scc1 {l}\ns_mov_b64 exec, {(1<<n)-1}')
    g.poll(f'buffer_load_dword v{d}, v{a}, s[8:11], s97 offen sc1', f'v_cmp_ne_u32 vcc, s62, v{d}', BIG, name)
    g.e(f's_mov_b64 exec, -1\n{l}:\ns_barrier')
def lnp1(g,R,dma,so):
    e=g.e; p=g.p
    e('v_mov_b32 v105, s62\nv_mov_b32 v107, s62\nv_mov_b32 v92, 0\nv_mov_b32 v93, 0')
    g.wv('x')
    g.st(11)
    for i in sorted({i>>1 for i in R}): e(f'ds_bpermute_b32 v{77+i}, v108, v{72+i}')
    dma(p['d1'])
    for i in range(5): e(f'v_dot2c_f32_bf16 v92, v{72+i}, v94\nv_dot2c_f32_bf16 v93, v{72+i}, v{72+i}')
    for c in ['row_ror:8','row_ror:4','row_ror:2','row_ror:1']:
        g.dpp('v_add_f32',92,92,92,c); g.dpp('v_add_f32',93,93,93,c)
    e("""v_permlane32_swap_b32 v92, v93
    v_add_f32 v92, v92, v93
    v_mov_b32 v93, v92
    v_permlane16_swap_b32 v92, v93
    v_add_f32 v92, v92, v93
    v_mov_b32 v93, v92
    v_permlane32_swap_b32 v92, v93
    s_waitcnt lgkmcnt(0)""")
    up=[(f'v_lshlrev_b32 v{82+2*i}, 16, v{77+i}\n' if 2*i in R else '')+(f'v_and_b32 v{83+2*i}, 0xffff0000, v{77+i}' if 2*i+1 in R else '') for i in range(5)]
    e(f"""v_mul_f32 v92, {fl(1/640)}, v92
    v_mul_f32 v93, {fl(1/640)}, v93
    {up[0]}
    v_fma_f32 v93, -v92, v92, v93
    {up[1]}
    v_max_f32 v93, 0, v93
    {up[2]}
    v_add_f32 v93, {fl(1e-5)}, v93
    {up[3]}
    v_rsq_f32 v93, v93
    {up[4]}
    v_mul_f32 v92, v92, v93""")
    for i in R: e(f'v_fma_f32 v{82+i}, v{82+i}, v93, -v92')
    for i in R: e(f'v_cvt_pk_bf16_f32 v{82+i}, v{82+i}, v{82+i}')
    for i in R:
        for r in range(4): e(f'v_and_b32 v{168+4*i+r}, v{82+i}, v{32+r}')
    g.st(12)
    for i in R:
        g.wv(f'q{i}'); g.mfma(96+4*(i&1),168+4*i,128+4*i,i<R[0]+2)
        if i<p['dq']: dma(1)
    e('v_pk_add_f32 v[96:97], v[96:97], v[100:101]\nv_pk_add_f32 v[98:99], v[98:99], v[102:103]')
    e('v_cvt_pk_bf16_f32 v104, v96, v97\nv_cvt_pk_bf16_f32 v106, v98, v99')
    g.v(f'buffer_store_dwordx4 v[104:107], v110, s[8:11], 0 offen'+('' if so=='s35' and 's' in p['x'] else f'\nbuffer_store_dwordx4 v[104:107], v110, s[8:11], {so} offen sc1'))
def Upart(g):
    e=g.e; p=g.p
    e('.p2align 6\nLU:' if p['tf'] else 'LU:'); g.vm=[None]
    e(f'''s_lshl_b32 s30, s29, 2
    s_add_u32 s30, s30, s3
    s_lshl_b32 s34, s28, 8
    s_lshl_b32 s32, s30, 18
    s_add_u32 s32, s32, s34
    v_lshrrev_b32 v15, 5, v1
    v_xor_b32 v15, v15, v3
    v_lshlrev_b32 v15, 4, v15
    v_lshl_add_u32 v208, v2, 13, v15
    s_mul_i32 s99, s30, {40*8192}
    s_add_u32 s99, s99, s34
    s_add_u32 s99, s99, {8192*p['ns']}
    v_mul_u32_u24 v108, 20, v1
    v_mul_u32_u24 v109, 81920, v2
    v_lshl_add_u32 v109, v3, 4, v109
    s_lshl_b32 s34, s28, 14
    s_add_u32 s34, s34, {Q1F}
    s_lshl_b32 s35, s3, 7
    s_add_u32 s35, s35, s34
    v_lshlrev_b32 v16, 9, v3
    v_lshl_add_u32 v16, v2, 5, v16
    v_add_u32 v16, s35, v16
    v_add_u32 v17, 8192, v16
    s_lshl_b32 s35, s30, 9
    s_add_u32 s98, s34, s35
    s_lshl_b32 s100, s3, 13''')
    for i in range(1,8): e(f'v_xor_b32 v{208+i}, {32*i}, v208')
    if p['pu']: e('v_lshrrev_b32 v115, 1, v1\nv_lshl_add_u32 v115, v115, 13, s32\nv_and_b32 v15, 1, v1\nv_lshl_add_u32 v115, v15, 7, v115')
    if p['puh']: g.oob(115,f'v_cmp_le_u32 vcc, {p["puh"]}, v1')
    e('s_waitcnt lgkmcnt(0)')
    g.st(10)
    sp=p['ns']<10; PO='po' if p['ua'] else '?po'
    e('s_load_dword s62, s[60:61], 0'); g.srd(12,36,1280)
    if sp:
        g.srd(16,40,640*8192)
        g.v('buffer_load_dwordx4 v[72:75], v108, s[12:15], 0 offen\nbuffer_load_dword v76, v108, s[12:15], 0 offen offset:16','x')
        for i in range(p['ns'],10):
            g.v(f'buffer_load_dwordx4 v[{128+4*i}:{131+4*i}], v109, s[16:19], s99 offen {p["nq"]}',f'q{i}')
            if i<9: e('s_add_u32 s99, s99, 8192')
    e('s_mov_b32 s8, s60\ns_mov_b32 s9, s61'); g.srd(20,42,512*8192)
    if not p['dty']&1: g.v('buffer_load_dword v26, v16, s[8:11], 0 offen sc1','pre')
    if not p['dty']&1 and sp: g.v('buffer_load_dword v25, v17, s[8:11], 0 offen sc1','pre')
    def ukl(a,b):
        for i in range(a,b):
            e(f's_mov_b32 m0, s100\ns_add_u32 s100, s100, 1024')
            g.v(f'buffer_load_dwordx4 v{208+i}, s[20:23], s32 offen {p["nuk"]} lds',f'uk{i}')
            if i<7: e('s_add_u32 s32, s32, 32768')
    ukl(0,p['uk0'])
    e(f'''s_lshl_b32 s34, s28, 10
    s_lshl_b32 s35, s30, 6
    s_add_u32 s34, s34, s35
    s_add_u32 s34, s34, {QA}
    v_lshl_add_u32 v18, v3, 2, s34''')
    g.oob(18,'v_cmp_gt_u32 vcc, 16, v1')
    e(f'''s_lshl_b32 s63, s4, 3
    s_add_u32 s63, s63, s5
    s_lshl_b32 s96, s63, 8
    s_add_u32 s96, s96, {OP}
    s_sub_u32 s63, s63, 8
    s_mul_i32 s34, s63, 1280
    s_add_u32 s34, s34, {FP}
    s_cmp_lt_u32 s63, 54
    s_cselect_b32 s35, 1280, 0
    s_cmp_lt_u32 s5, 8
    s_cselect_b32 s96, s96, s34
    s_cselect_b32 s35, 256, s35
    s_lshl_b32 s34, s28, 10
    s_lshl_b32 s97, s29, 8
    s_add_u32 s34, s34, s97
    s_add_u32 s34, s34, {QA-256}
    s_add_u32 s97, s96, 1024
    s_cmp_eq_u32 s35, 1280
    s_cselect_b32 s97, s97, {OOB}
    s_min_u32 s35, s35, 1024
    v_lshlrev_b32 v27, 4, v0
    v_cmp_gt_u32 vcc, s35, v27
    v_add_u32 v19, s96, v27
    v_cndmask_b32 v19, v6, v19, vcc
    v_add_u32 v60, s97, v27
    v_add_u32 v61, s34, v27
    v_cmp_gt_u32 vcc, 16, v0
    v_cndmask_b32 v60, v61, v60, vcc
    v_cmp_gt_u32 vcc, 32, v0
    v_cndmask_b32 v60, v6, v60, vcc
''')
    if p['oc']: e('s_lshl_b32 s34, s3, 3\ns_add_u32 s34, s34, s5\ns_cmp_lt_u32 s34, 8\ns_cselect_b64 vcc, -1, 0\nv_lshl_add_u32 v63, v2, 14, s96\nv_lshl_add_u32 v63, v3, 4, v63\nv_cndmask_b32 v19, v19, v63, vcc\nv_add_u32 v63, 0x10000, v63\nv_cndmask_b32 v63, v6, v63, vcc')
    (g.v if p['ua'] else g.w0)('buffer_store_dwordx4 v[8:11], v60, s[8:11], 0 offen sc1\nbuffer_store_dwordx4 v[8:11], v19, s[8:11], 0 offen sc1'+('\nbuffer_store_dwordx4 v[8:11], v63, s[8:11], 0 offen sc1' if p['oc'] else ''),PO)
    g.masks(32,36)
    e('s_waitcnt lgkmcnt(0)\ns_add_u32 s62, s62, 1')
    own_flag(g,38)
    e('s_lshl_b32 s34, s3, 13\nv_xor_b32 v40, v2, v3\nv_lshlrev_b32 v40, 4, v40\nv_lshl_add_u32 v40, v3, 9, v40\nv_add_u32 v40, s34, v40')
    for ks in range(1,4): e(f'v_xor_b32 v{40+ks}, {64*ks}, v40')
    e(f's_lshl_b32 s34, s3, 10\nv_lshlrev_b32 v44, 4, v1\nv_add_u32 v45, s34, v44\nv_add_u32 v45, 0x8000, v45\ns_mov_b32 s35, {Q1S-Q1F}')
    chk='v_xor_b32 v46, s62, v21\nv_xor_b32 v47, s62, v23\nv_xor_b32 v28, s62, v25\nv_xor_b32 v29, s62, v27\nv_or3_b32 v46, v46, v47, v28\nv_or_b32 v46, v46, v29\nv_cmp_ne_u32 vcc, 0, v46'
    ld=lambda so: f'buffer_load_dwordx4 v[20:23], v16, s[8:11], {so} offen sc1\nbuffer_load_dwordx4 v[24:27], v16, s[8:11], {so} offen offset:16 sc1'
    if p['uk0']<8:
        ukl(p['uk0'],p['uk1'])
        if p['uk1']<8: g.wv('pre')
        g.st(3); ukl(p['uk1'],8)
    if p['tw']&1:
        e(f'''s_mul_i32 s34, s4, 655360
        s_cmp_eq_u32 s3, 0
        s_cselect_b32 s34, s34, 0
        s_movk_i32 s33, 10240
        s_cselect_b32 s33, s33, 34560
        s_mov_b32 s26, {32*163840}
        s_cselect_b32 s26, s26, {640*3456}
        s_cselect_b64 s[24:25], s[46:47], s[50:51]
        s_cmp_eq_u32 s3, 2
        s_cselect_b64 s[24:25], s[52:53], s[24:25]
        s_cmp_eq_u32 s3, 3
        s_cselect_b64 s[24:25], s[54:55], s[24:25]
        s_mov_b32 s27, 0x20000
        v_mul_lo_u32 v31, v1, s33''')
        g.v('buffer_load_dword v254, v31, s[24:27], s34 offen')
    if sp:
        e('s_add_u32 s98, s98, 8192\nv_lshlrev_b32 v110, 5, v3\nv_lshl_add_u32 v110, v2, 4, v110\nv_add_u32 v110, s98, v110\ns_lshl_b32 s34, s30, 4\nv_lshl_add_u32 v108, v2, 2, s34\nv_mov_b32 v94, 0x3f803f80')
        g.oob(110,'v_cmp_gt_u32 vcc, 32, v1')
        lnp1(g,range(p['ns'],10),lambda n: None,'s35')
        g.st(13)
    if p['tpo']==4:
        e(f's_lshl_b32 s34, s28, 2\ns_add_u32 s34, s34, s29\ns_lshl_b32 s34, s34, 14\ns_add_u32 s34, s34, {CC}\nv_lshl_add_u32 v62, v1, 4, s34\ns_movk_i32 s24, 4096\ns_movk_i32 s25, 8192\ns_movk_i32 s26, 12288')
        g.w0('\n'.join(f'buffer_store_dwordx4 v[8:11], v62, s[8:11], {["0","s24","s25","s26"][i>>2]} offen offset:{1024*(i&3)} sc1' for i in range(16)),'?po')
    if p['ufl']==0: g.w0('buffer_store_dword v39, v38, s[8:11], 0 offen sc1','?fl',PO)
    for i in range(3):
        e(f'''v_add_u32 v12, {64*i}, v1
        v_mul_u32_u24 v13, 5462, v12
        v_lshrrev_b32 v13, 16, v13
        v_mul_u32_u24 v14, 12, v13
        v_sub_u32 v12, v12, v14
        v_lshrrev_b32 v14, 1, v13
        v_and_b32 v15, 2, v14
        v_xor_b32 v12, v12, v15
        v_and_b32 v14, 1, v14
        v_and_or_b32 v14, v13, 12, v14
        v_and_b32 v13, 1, v13
        v_lshl_add_u32 v14, v13, 4, v14
        v_mul_u32_u24 v14, 1280, v14
        v_lshl_add_u32 v{112+i}, v12, 4, v14''')
    g.wv('uk7')
    for t in range(2):
        for ks in range(4): e(f'ds_read_b128 v[{64+16*t+4*ks}:{67+16*t+4*ks}], v{40+ks} offset:{256*t}')
    if p['ufl']==1: g.w0('buffer_store_dword v39, v38, s[8:11], 0 offen sc1','?fl',PO)
    g.st(4)
    if p['fw'] or p['ow']: e(f's_lshl_b32 s34, s4, 7\ns_add_u32 s34, s34, {FL+128*128}\nv_lshl_add_u32 v30, v3, 10, s34')
    e('s_cmp_ge_u32 s5, 8\ns_cbranch_scc1 LFZ')
def pref(g):
    if g.p['pu']:
        g.e(f's_mov_b32 s46, {512*8192}\ns_mov_b32 s47, 0x20000')
        for i in range(g.p['pu']): g.v(f'buffer_load_dword v{116+i}, v115, s[44:47], 0 offen offset:{64*i} nt')
def Utail(g):
    e=g.e; p=g.p; role=g.role; g.role='U'
    chk='v_xor_b32 v46, s62, v21\nv_xor_b32 v47, s62, v23\nv_xor_b32 v28, s62, v25\nv_xor_b32 v29, s62, v27\nv_or3_b32 v46, v46, v47, v28\nv_or_b32 v46, v46, v29\nv_cmp_ne_u32 vcc, 0, v46'
    ld=lambda so: f'buffer_load_dwordx4 v[20:23], v16, s[8:11], {so} offen sc1\nbuffer_load_dwordx4 v[24:27], v16, s[8:11], {so} offen offset:16 sc1'
    sp=p['ns']<10
    if sp:
        l0=ld; ld=lambda so: l0(so)+'\n'+l0(so).replace('v16','v17').replace('20:23','48:51').replace('24:27','52:55')
        chk=chk.replace('v_or_b32 v46, v46, v29','v_xor_b32 v47, s62, v49\nv_or3_b32 v46, v46, v47, v29\nv_xor_b32 v47, s62, v51\nv_xor_b32 v28, s62, v53\nv_xor_b32 v29, s62, v55\nv_or3_b32 v46, v46, v47, v28\nv_or_b32 v46, v46, v29')
    g.dual(ld,chk,'e1')
    e('ds_write2_b32 v45, v20, v22 offset0:0 offset1:1\nds_write2_b32 v45, v24, v26 offset0:2 offset1:3')
    if sp: e('v_add_u32 v45, 4096, v45\nds_write2_b32 v45, v48, v50 offset0:0 offset1:1\nds_write2_b32 v45, v52, v54 offset0:2 offset1:3')
    e('s_waitcnt lgkmcnt(0)\ns_barrier')
    n=8 if sp else 4
    for ks in range(n): e(f'ds_read_b128 v[{128+4*ks}:{131+4*ks}], v44 offset:{0x8000+1024*ks}')
    g.st(5)
    for ks in range(n):
        e(f's_waitcnt lgkmcnt({n-1-ks})')
        for t in range(2): g.mfma(48+4*t,128+4*ks,64+16*t+4*(ks&3),ks==0)
    e(f'''v_add_f32 v48, v48, v49
    v_add_f32 v50, v50, v51
    v_add_f32 v52, v52, v53
    v_add_f32 v54, v54, v55
    v_add_f32 v48, v48, v50
    v_add_f32 v52, v52, v54
    v_permlane32_swap_b32 v48, v52
    v_add_f32 v48, v48, v52
    v_mov_b32 v49, v48
    v_permlane16_swap_b32 v48, v49
    v_add_f32 v48, v48, v49
    v_mul_f32 v48, {fl(128**-0.5*math.log2(math.e))}, v48
    v_mov_b32 v49, v48
    v_permlane32_swap_b32 v48, v49
    v_cvt_pk_bf16_f32 v48, v48, v49''')
    g.v('buffer_store_dword v48, v18, s[8:11], 0 offen sc1')
    g.st(6)
    if role=='Z': pref(g)
    g.role=role

RB=0xA000
def Opart(g):
    e=g.e; p=g.p
    g.srd(24,46,0 if 'o' in p['x'] else 32*163840)
    e(f'''s_lshl_b32 s28, s4, 2
    s_add_u32 s28, s28, s3
    s_mul_i32 s31, s28, 163840
    s_mul_i32 s34, s5, 160
    s_and_b32 s97, s34, 32
    s_sub_u32 s34, s34, s97
    s_add_u32 s31, s31, s34
    s_mul_i32 s34, s3, 24576
    s_add_u32 s34, s34, {RB}
    s_mov_b32 s30, s34''')
    if p['orev']: e('s_and_b32 s99, s5, 1\ns_mul_i32 s98, s99, 12288\ns_add_u32 s34, s34, s98\ns_mul_i32 s99, s99, 81920\ns_add_u32 s31, s31, s99\ns_lshl_b32 s98, s98, 1\ns_lshl_b32 s99, s99, 1')
    for i in range(24):
        if i==p['opre']:
            Utail(g)
            if p['ow']: g.flagpoll(30,31,'ow')
        if i==p['po']: pref(g)
        e('s_mov_b32 m0, s34\ns_add_u32 s34, s34, 1024')
        g.v(f'buffer_load_dwordx4 v{112+i%3}, s[24:27], s31 offen {p["no"]} lds','wo')
        if i%3==2 and i<23: e(f's_add_u32 s31, s31, {2560 if i%6==2 else 40960-2560}')
        if i==11 and p['orev']: e('s_sub_u32 s34, s34, s98\ns_sub_u32 s31, s31, s99')
    e(f'''v_lshrrev_b32 v13, 2, v1
    v_mul_u32_u24 v13, 192, v13
    v_and_b32 v12, 3, v3
    v_lshl_add_u32 v13, v12, 3, v13
    v_add_u32 v13, s30, v13
    v_and_b32 v20, 1, v2
    v_lshlrev_b32 v20, 5, v20
    s_add_u32 s34, s97, 32
    v_xor_b32 v21, s34, v20
    v_xor_b32 v20, s97, v20
    v_add_u32 v21, v21, v13
    v_add_u32 v20, v20, v13
    s_lshl_b32 s34, s3, 5
    s_add_u32 s34, s34, s4
    s_add_u32 s34, s34, 128
    s_lshl_b32 s34, s34, 7
    s_add_u32 s34, s34, {FL}
    v_lshl_add_u32 v14, v12, 10, s34
    s_lshl_b32 s34, s28, 10
    s_add_u32 s34, s34, {CXF}
    v_lshlrev_b32 v15, 8, v3
    v_lshl_add_u32 v15, v2, 4, v15
    v_add_u32 v15, s34, v15
    s_mov_b32 s35, {CXS-CXF}
    s_lshl_b32 s34, s3, 2
    v_lshl_add_u32 v16, v3, 4, s34
    v_lshlrev_b32 v17, 5, v1
    v_lshl_add_u32 v18, v1, 2, s96''')
    if p['oc']: e('s_lshl_b32 s34, s3, 14\nv_add_u32 v18, s34, v18\ns_mov_b32 s31, 0x10000')
    g.oob(15,'v_cmp_gt_u32 vcc, 4, v3'); g.oob(18,'v_cmp_gt_u32 vcc, 40, v%d'%p['oc'])
    if p['hu']&1: hu_addr(g,48)
    if p['pfl']&2: g.flagpre(14,19)
    g.dry0('O')
    g.wv('wo')
    for ks in range(4):
        for ct in range(5):
            for eh in range(2):
                r=64+20*ks+4*ct+2*eh
                e(f'ds_read_b64_tr_b16 v[{r}:{r+1}], v{20+(ct&1)} offset:{(32*ks+16*eh)*192+64*(ct>>1)}')
    g.st(7)
    (g.flagchk if p['pfl']&2 else g.flagpoll)(14,19,'of')
    e('s_waitcnt lgkmcnt(0)')
    g.st(8)
    ld=lambda so: '\n'.join(f'buffer_load_dwordx4 v[{32+4*k}:{35+4*k}], v15, s[8:11], {so} offen offset:{64*k} sc1' for k in range(4))
    chk=g.chk(range(32,48),19)
    if p['il']&4: chk=ilv([mf(144+4*ct,32,64+4*ct,None) for ct in range(4)],chk,3)
    g.dual(ld,chk,'e4')
    if p['hu']&1: g.v('buffer_store_dword v49, v48, s[8:11], 0 offen sc1')
    g.st(9)
    g.dry1('O')
    for ks in range(4):
        for ct in range(4 if ks==0 and p['il']&4 else 0,5): g.mfma(144+4*ct,32+4*ks,64+20*ks+4*ct,ks==0)
    for ct in range(5):
        r=144+4*ct; e(f'v_add_f32 v{r}, v{r}, v{r+1}\nv_add_f32 v{r+2}, v{r+2}, v{r+3}')
    e('s_mov_b64 exec, 0xffff')
    for ct in range(5):
        r=144+4*ct; e(f'v_add_f32 v{r}, v{r}, v{r+2}\nds_write_b32 v16, v{r} offset:{0x9000+256*ct}')
    e('''s_mov_b64 exec, -1
    s_waitcnt lgkmcnt(0)
    s_barrier
    ds_read_b128 v[52:55], v17 offset:0x9000
    ds_read_b128 v[56:59], v17 offset:0x9010
    s_waitcnt lgkmcnt(1)
    v_pk_add_f32 v[52:53], v[52:53], v[54:55]
    s_waitcnt lgkmcnt(0)
    v_pk_add_f32 v[56:57], v[56:57], v[58:59]
    v_add_f32 v52, v52, v53
    v_add_f32 v56, v56, v57
    v_cvt_pk_bf16_f32 v52, v52, v56''')
    g.dry2('O')
    g.v('buffer_store_dword v52, v18, s[8:11], 0 offen sc1')
    if p['oc']: g.v('buffer_store_dword v52, v18, s[8:11], s31 offen sc1')
    g.fin()

def Fpart(g):
    e=g.e; p=g.p
    e('LFZ:\ns_cmp_ge_u32 s63, 54\ns_cbranch_scc1 LZ')
    g.vm=[None]
    n=0 if 'f' in p['x'] else 640*3456
    g.srd(16,50,n); g.srd(20,52,n); g.srd(24,54,n)
    e(f'''s_mul_i32 s31, s3, {160*3456}
    s_lshl_b32 s34, s63, 6
    s_add_u32 s31, s31, s34
    s_mul_i32 s34, s3, 20480
    s_add_u32 s34, s34, {RB}
    s_mov_b32 s30, s34
    v_lshrrev_b32 v12, 2, v1
    v_mul_u32_u24 v12, 3456, v12
    v_and_b32 v13, 3, v1
    v_lshl_add_u32 v12, v13, 4, v12''')
    if p['frev']: e(f's_and_b32 s99, s5, 1\ns_mul_i32 s98, s99, 10240\ns_add_u32 s34, s34, s98\ns_mul_i32 s99, s99, {80*3456}\ns_add_u32 s31, s31, s99\ns_lshl_b32 s98, s98, 1\ns_lshl_b32 s99, s99, 1')
    for i in range(10):
        for m in range(2):
            if 2*i+m==p['fpre']:
                Utail(g)
                if p['fw']: g.flagpoll(30,31,'fw')
            if 2*i+m==p['pff']: pref(g)
            e('s_mov_b32 m0, s34\ns_add_u32 s34, s34, 1024')
            g.v(f'buffer_load_dwordx4 v12, s[{16+4*m}:{19+4*m}], s31 offen {p["nf"]} lds','gu')
        if i<9: e(f's_add_u32 s31, s31, {16*3456}')
        if i==4 and p['frev']: e('s_sub_u32 s34, s34, s98\ns_sub_u32 s31, s31, s99')
    e(f'''v_lshrrev_b32 v17, 1, v2
    v_lshlrev_b32 v17, 11, v17
    v_and_b32 v18, 1, v2
    v_lshl_add_u32 v17, v18, 9, v17
    v_lshrrev_b32 v18, 2, v3
    v_lshl_add_u32 v17, v18, 6, v17
    v_lshl_add_u32 v17, v13, 3, v17
    v_add_u32 v17, s30, v17
    s_lshl_b32 s34, s3, 11
    s_add_u32 s34, s34, {FL}
    v_lshl_add_u32 v18, v3, 7, s34
    s_lshl_b32 s34, s3, 9
    s_add_u32 s34, s34, {OP}
    s_mul_i32 s35, s4, {16384*p['oc']}
    s_add_u32 s34, s34, s35
    v_lshl_add_u32 v20, v3, 11, s34
    v_lshl_add_u32 v20, v2, 4, v20
    v_lshrrev_b32 v21, 1, v2
    v_mul_u32_u24 v21, 96, v21
    v_add_u32 v21, v21, v20
    v_mul_u32_u24 v22, 80, v3
    s_lshl_b32 s34, s3, 4
    v_lshl_add_u32 v23, v2, 2, s34
    v_add_u32 v23, v23, v22
    v_and_b32 v24, 7, v3
    v_lshl_add_u32 v24, v2, 3, v24
    v_lshrrev_b32 v25, 3, v3
    v_lshl_add_u32 v24, v25, 5, v24
    v_mul_u32_u24 v24, 80, v24
    s_lshl_b32 s34, s3, 8
    s_add_u32 s34, s34, s96
    v_lshlrev_b32 v26, 4, v3
    v_lshl_add_u32 v26, v2, 3, v26
    s_add_u32 s35, s96, 1024
    v_add_u32 v27, s35, v26
    v_add_u32 v26, s34, v26
    v_mov_b32 v29, v6''')
    g.oob(26,'v_cmp_gt_u32 vcc, 32, v1'); g.oob(27,'v_cmp_gt_u32 vcc, 32, v0')
    if p['pfl']&1: g.flagpre(18,19)
    g.dry0('F')
    e(f'''s_mul_i32 s31, s63, {32*1280}
    v_mul_u32_u24 v14, 10240, v2
    v_lshl_add_u32 v14, v3, 4, v14
    v_add_u32 v15, 1024, v14
    s_lshl_b32 s34, s3, 8
    v_add_u32 v14, s34, v14''')
    g.oob(15,'v_cmp_gt_u32 vcc, 64, v0')
    e('s_add_u32 s33, s31, 3840\ns_add_u32 s32, s31, 7680')
    wd=lambda r,a: '\n'.join(f'buffer_load_dwordx4 v[{r+4*i}:{r+3+4*i}], v{a}, s[24:27], {["s31","s33","s32"][i//3]} offen offset:{1280*(i%3)} {p["nf"]}' for i in range(8))
    g.v(wd(160,14),'wd')
    g.w0(wd(192,15),'?wd')
    e('s_mul_i32 s34, s3, 320\nv_lshl_add_u32 v16, v2, 4, s34'); g.oob(16,'v_cmp_eq_u32 vcc, 8, v3')
    for ks in range(5): g.v(f'buffer_load_dwordx4 v[{40+4*ks}:{43+4*ks}], v16, s[12:15], 0 offen offset:{64*ks}','x')
    g.wv('gu')
    for ks in range(5):
        for t in range(4):
            for eh in range(2):
                r=64+16*ks+4*t+2*eh
                e(f'ds_read_b64_tr_b16 v[{r}:{r+1}], v17 offset:{4096*ks+1024*(t>>1)+256*eh+32*(t&1)}')
    g.wv()
    e('v_mov_b32 v28, 0x3f803f80\nv_cmp_eq_u32 vcc, 12, v3')
    for r in range(40,60): e(f'v_cndmask_b32 v{r}, v{r}, v28, vcc')
    e('v_cmp_gt_u32 s[98:99], 9, v3')
    g.st(7)
    if p['hu']&2: hu_addr(g,29)
    (g.flagchk if p['pfl']&1 else g.flagpoll)(18,19,'ff')
    if p['hu']&1: e('s_and_b32 s34, s63, 7\ns_lshl_b32 s34, s34, 3\nv_add_u32 v18, s34, v1'); hupoll(g,18,19,8,'fh')
    e('s_waitcnt lgkmcnt(0)\ns_mov_b32 exec_lo, 0x00ff00ff\ns_mov_b32 exec_hi, 0x00ff00ff')
    g.st(8)
    ld='\n'.join(f'buffer_load_dwordx4 v[{40+4*k}:{43+4*k}], v{21 if k==2 else 20}, s[8:11], 0 offen offset:{[0,64,128,288,352][k]} sc1' for k in range(5))
    g.poll(ld,ilv([mf(224+4*t,40,64+4*t,None) for t in range(4)] if p['il']&8 else [],g.chk(range(40,60),19),3),BIG,'e5')
    e('s_mov_b64 exec, -1')
    hs='buffer_store_dword v30, v29, s[8:11], 0 offen sc1'
    if p['hu']&2 and p['fh']==0: g.v(hs)
    g.st(9)
    g.dry1('F')
    for ks in range(5):
        for t in range(4 if ks==0 and p['il']&8 else 0,4): g.mfma(224+4*t,40+4*ks,64+16*ks+4*t,ks==0)
        g.mfma(240,40+4*ks,40+4*ks,ks==0)
    if p['hu']&2 and p['fh']==1: g.v(hs)
    for t in range(5):
        r=224+4*t; e(f'v_add_f32 v{r}, v{r}, v{r+1}\nv_add_f32 v{r+2}, v{r+2}, v{r+3}\nv_add_f32 v{r}, v{r}, v{r+2}\nds_write_b32 v23, v{r} offset:{1280*t}')
    e('s_waitcnt lgkmcnt(0)\ns_barrier')
    if p['hu']&2 and p['fh']==2: g.v(hs)
    for w in range(4): e(f'ds_read_b128 v[{80+4*w}:{83+4*w}], v22 offset:{5120+16*w}')
    for w in range(4): e(f'ds_read_b128 v[{64+4*w}:{67+4*w}], v24 offset:{16*w}')
    def red(b):
        e(f'''v_pk_add_f32 v[{b}:{b+1}], v[{b}:{b+1}], v[{b+4}:{b+5}]
        v_pk_add_f32 v[{b+2}:{b+3}], v[{b+2}:{b+3}], v[{b+6}:{b+7}]
        v_pk_add_f32 v[{b+8}:{b+9}], v[{b+8}:{b+9}], v[{b+12}:{b+13}]
        v_pk_add_f32 v[{b+10}:{b+11}], v[{b+10}:{b+11}], v[{b+14}:{b+15}]
        v_pk_add_f32 v[{b}:{b+1}], v[{b}:{b+1}], v[{b+8}:{b+9}]
        v_pk_add_f32 v[{b+2}:{b+3}], v[{b+2}:{b+3}], v[{b+10}:{b+11}]
        v_add_f32 v{b}, v{b}, v{b+1}
        v_add_f32 v{b}, v{b}, v{b+2}''')
    e('s_waitcnt lgkmcnt(4)'); red(80)
    e('v_cndmask_b32 v81, 0, v80, s[98:99]\nv_mov_b32_dpp v82, v80 row_newbcast:12 row_mask:0xf bank_mask:0xf\ns_waitcnt lgkmcnt(0)')
    red(64)
    for c in ['row_ror:8','row_ror:4','row_ror:2','row_ror:1']: g.dpp('v_add_f32',81,81,81,c)
    k1=-2*math.log2(math.e)*math.sqrt(2/math.pi)
    e(f'''v_mul_f32 v82, {fl(1/640)}, v82
    v_mul_f32 v81, {fl(1/640)}, v81
    v_fma_f32 v64, -v82, v67, v64
    v_fma_f32 v81, -v82, v82, v81
    v_max_f32 v81, 0, v81
    v_add_f32 v81, {fl(1e-5)}, v81
    v_rsq_f32 v81, v81
    v_mov_b32 v66, {fl(k1)}
    v_mul_f32 v64, v64, v81
    v_mul_f32 v65, v64, v64
    v_fmac_f32 v66, {fl(k1*0.044715)}, v65
    v_mul_f32 v66, v66, v64
    v_exp_f32 v66, v66
    v_mul_f32_dpp v65, v64, v64 row_ror:8 row_mask:0xf bank_mask:0xf
    v_add_f32 v66, 1.0, v66
    v_rcp_f32 v66, v66
    v_mul_f32 v66, v66, v65
    v_cvt_pk_bf16_f32 v66, v66, v66''')
    for i in range(8):
        for r in range(4): g.dpp('v_and_b32',96+4*i+r,66,32+r,f'row_newbcast:{i}')
        if i: g.mfma(224,92+4*i,156+4*i,i==1); g.mfma(228,92+4*i,188+4*i,i==1)
    g.mfma(224,124,188,0); g.mfma(228,124,220,0)
    g.dry2('F')
    e('v_cvt_pk_bf16_f32 v224, v224, v225\nv_cvt_pk_bf16_f32 v225, v226, v227')
    g.v('buffer_store_dwordx2 v[224:225], v26, s[8:11], 0 offen sc1')
    e('v_cvt_pk_bf16_f32 v228, v228, v229\nv_cvt_pk_bf16_f32 v229, v230, v231')
    g.v('buffer_store_dwordx2 v[228:229], v27, s[8:11], 0 offen sc1')
    g.fin()

def Zpart(g):
    e=g.e
    e('LZ:'); g.vm=[None]
    Utail(g)
    if 'z' in g.p['x']: e('s_endpgm')
    g.srd(24,56,1280)
    e(f'''s_sub_u32 s63, s63, 54
    s_lshl_b32 s30, s63, 2
    s_add_u32 s30, s30, s3
    s_mul_i32 s31, s30, 52
    s_lshr_b32 s31, s31, 8
    s_lshl_b32 s34, s30, 5
    v_lshrrev_b32 v12, 1, v1
    v_and_b32 v13, 1, v1
    v_lshl_add_u32 v13, v13, 4, s34
    v_mul_u32_u24 v14, 1280, v12
    v_add_u32 v14, v14, v13
    v_add_u32 v14, {FP}, v14
    v_add_u32 v15, {32*1280}, v14
    s_mul_i32 s35, s31, 96
    s_add_u32 s35, s35, {OP}
    s_mul_i32 s33, s4, {16384*g.p['oc']}
    s_add_u32 s35, s35, s33
    v_lshl_add_u32 v16, v12, 11, s35
    v_add_u32 v16, v16, v13
    v_lshlrev_b32 v17, 4, v3
    v_lshl_add_u32 v17, v2, 3, v17
    v_add_u32 v17, s34, v17
    v_and_b32 v18, 0x2e, v1''')
    g.oob(17,'v_cmp_eq_u32 vcc, 0, v18'); g.oob(15,'v_cmp_gt_u32 vcc, 44, v1'); g.oob(16,'v_cmp_gt_u32 vcc, 16, v1'); g.oob(13,'v_cmp_gt_u32 vcc, 2, v1')
    g.v('buffer_load_dwordx4 v[40:43], v13, s[12:15], 0 offen')
    e(f'''v_and_b32 v19, 7, v1
    v_lshrrev_b32 v20, 3, v1
    v_lshl_add_u32 v20, v19, 3, v20
    v_add_u32 v20, 64, v20
    s_lshl_b32 s35, s31, 3
    v_add_u32 v19, s35, v19
    v_cmp_gt_u32 vcc, 54, v1
    v_cndmask_b32 v19, v19, v20, vcc
    v_lshlrev_b32 v19, 7, v19
    v_add_u32 v19, {FL}, v19
    v_mov_b32 v22, 0
    v_mov_b32 v23, s62
    s_lshl_b32 s35, s63, 8
    v_add_u32 v21, s35, v0''')
    g.oob(22,'v_cmp_eq_u32 vcc, 0, v21')
    for r in range(4): e(f'v_and_b32 v{36+r}, 0x3f803f80, v{32+r}')
    g.dry0('Z')
    if g.p['hu']&2:
        g.flagpoll(19,20,'zf')
        e('s_min_u32 s34, s63, 5\ns_lshl_b32 s34, s34, 3\ns_add_u32 s34, s34, 64\nv_add_u32 v19, s34, v1'); hupoll(g,19,20,7,'zh')
        g.st(8)
        g.mfma(56,36,40,1)
        g.poll('buffer_load_dwordx4 v[48:51], v14, s[8:11], 0 offen sc1\nbuffer_load_dwordx4 v[52:55], v15, s[8:11], 0 offen sc1\nbuffer_load_dwordx4 v[44:47], v16, s[8:11], 0 offen sc1',g.chk(range(44,56),20),BIG,'e6')
        g.mfma(56,36,44,0)
    else:
        if g.p['hu']&1:
            g.flagpoll(19,20,'zf')
            e('v_mov_b32 v19, v1'); hupoll(g,19,20,8,'zh')
        else: g.flagpoll(19,20,'zf')
        g.mfma(56,36,40,1)
        g.st(7)
        g.poll('buffer_load_dwordx4 v[44:47], v16, s[8:11], 0 offen sc1',g.chk(range(44,48),20),BIG,'e5z')
        g.mfma(56,36,44,0)
        g.st(8)
        g.poll('buffer_load_dwordx4 v[48:51], v14, s[8:11], 0 offen sc1\nbuffer_load_dwordx4 v[52:55], v15, s[8:11], 0 offen sc1',ilv([mf(60,36,48,56),mf(60,36,52,60)] if g.p['il']&16 else [],g.chk(range(48,56),20),3),BIG,'e6')
    g.st(9)
    g.dry1('Z')
    if not g.p['il']&16: e(mf(60,36,48,56)+'\n'+mf(60,36,52,60))
    for c in ['row_ror:8','row_ror:4','row_ror:2']:
        for r in range(4): g.dpp('v_add_f32',(56 if c[-1]=='2' else 60)+r,60+r,60+r,c)
    e('v_cvt_pk_bf16_f32 v56, v56, v57\nv_cvt_pk_bf16_f32 v57, v58, v59')
    g.dry2('Z')
    g.v('buffer_store_dwordx2 v[56:57], v17, s[24:27], 0 offen\nbuffer_store_dword v23, v22, s[8:11], 0 offen sc1')
    g.fin()

def ff(k): return ((k&7)<<1)|(k>>3)
QL=0x20000; PL=0x24000; ML=0x25000; SL=0x25100
def Tpart(g):
    e=g.e; p=g.p
    e('LT:' if p['tf'] else '.p2align 6\nLT:'); g.vm=[None]
    e('s_lshl_b32 s101, s29, 2\ns_add_u32 s101, s101, s3')
    e('s_and_b32 s98, s5, 15\ns_lshl_b32 s99, s4, 2\ns_add_u32 s99, s99, s3' if p['qm'] else 's_mov_b32 s98, s101\ns_mov_b32 s99, s28')
    e(f"""v_mul_u32_u24 v108, 20, v1
    s_mul_i32 s97, s98, {40*8192}
    s_lshl_b32 s35, s99, 8
    s_add_u32 s97, s97, s35
    v_mul_u32_u24 v109, 81920, v2
    v_lshl_add_u32 v109, v3, 4, v109
    s_bfe_u32 s30, s2, 0x30004
    s_lshl_b32 s34, s4, 3
    s_add_u32 s30, s30, s34
    s_lshl_b32 s32, s30, 17
    s_lshl_b32 s96, s3, 15
    s_and_b32 s31, s5, 1
    s_lshl_b32 s34, s31, 14
    s_add_u32 s96, s96, {'s34' if p['rev'] else 0}
    s_add_u32 s32, s32, s96
    s_mov_b32 s100, s96
    v_lshlrev_b32 v16, 4, v1
    s_mov_b32 s14, 1280
    s_mov_b32 s15, 0x20000
    s_mov_b32 s18, {8192*1024}
    s_mov_b32 s19, 0x20000
    s_mov_b32 s22, {640*8192}
    s_mov_b32 s23, 0x20000
    s_lshl_b32 s63, s28, 2
    s_add_u32 s63, s63, s29
    s_lshl_b32 s34, s63, 8
    s_add_u32 s34, s34, {CXF}
    v_lshl_add_u32 v111, v3, 4, s34
    v_mul_u32_u24 v36, {CXS-CXF}, v2
    v_add_u32 v111, v111, v36
    s_lshl_b32 s35, s3, 6
    s_add_u32 s34, s34, s35
    v_lshl_add_u32 v13, v3, 2, s34""")
    g.oob(111,'v_cmp_gt_u32 vcc, 32, v1')
    for k in range(1,16): e(f'v_xor_b32 v{16+k}, {16*ff(k)}, v16')
    e('s_waitcnt lgkmcnt(0)')
    g.st(10)
    e('s_load_dword s62, s[60:61], 0\ns_mov_b32 s12, s36\ns_mov_b32 s13, s37\ns_mov_b32 s20, s40\ns_mov_b32 s21, s41')
    g.v('buffer_load_dwordx4 v[72:75], v108, s[12:15], 0 offen\nbuffer_load_dword v76, v108, s[12:15], 0 offen offset:16','x')
    for i in range(p['ns']):
        g.v(f'buffer_load_dwordx4 v[{128+4*i}:{131+4*i}], v109, s[20:23], s97 offen {p["nq"]}',f'q{i}')
        if i<9: e('s_add_u32 s97, s97, 8192')
    e('s_mov_b32 s16, s38\ns_mov_b32 s17, s39\ns_mov_b32 s8, s60\ns_mov_b32 s9, s61')
    so=['0','s24','s25','s26']
    fld='buffer_load_dword v7, v14, s[8:11], 0 offen sc1'
    nd=[0]
    def dma(n):
        for _ in range(n):
            k=nd[0]
            if k>=32: return
            nd[0]+=1
            if k%4==0: e('s_mov_b32 m0, s100\ns_add_u32 s100, s100, 4096')
            if k>=p['cwin']: g.wv(f'c{k-p["cwin"]}')
            g.v(f'buffer_load_dwordx4 v{16+k%16}, s[16:19], s32 offen offset:{1024*(k%4)} {p["nc"]} lds',f'c{k}')
            if k%4==3: e('s_add_u32 s32, s32, 4096')
            if k==15 and p['rev']: e('s_lshl_b32 s33, s31, 15\ns_sub_u32 s32, s32, s33\ns_sub_u32 s100, s100, s33')
            if k==p['fi']: g.v(fld,'f')
    g.w0('buffer_store_dwordx4 v[8:11], v111, s[8:11], 0 offen sc1','?po')
    dma(p['d0'])
    if p['tw']&2:
        g.srd(24,44,512*8192); e('v_lshlrev_b32 v36, 14, v1\ns_lshl_b32 s34, s29, 20')
        g.w0('buffer_load_dword v254, v36, s[24:27], s34 offen','?tw')
    def pois(k):
        if p['tpo']==k:
            for r in range(4):
                if r: e(f'v_xor_b32 v36, {1024*r*p["sw"]}, v12')
                g.v(f'buffer_store_dwordx4 v[8:11], v{36 if r else 12}, s[8:11], {so[r]} offen sc1','po')
    g.masks(32,36)
    e(f"""s_lshl_b32 s34, s99, 14
    s_lshl_b32 s35, s98, 9
    s_add_u32 s34, s34, s35
    s_add_u32 s34, s34, {Q1F}
    v_lshlrev_b32 v110, 5, v3
    v_lshl_add_u32 v110, v2, 4, v110
    v_add_u32 v110, s34, v110
    s_lshl_b32 s34, s98, 4
    v_lshl_add_u32 v108, v2, 2, s34
    s_lshl_b32 s35, s31, 2
    s_add_u32 s35, s35, s3
    s_lshl_b32 s97, s35, 7
    s_add_u32 s97, s97, {FL}
    v_lshl_add_u32 v14, v3, 10, s97
    s_lshl_b32 s35, s35, 12
    s_add_u32 s35, s35, {QA}
    v_add_u32 v15, s35, v16
    v_mov_b32 v94, 0x3f803f80
    s_mov_b32 s27, {Q1S-Q1F}""")
    g.oob(110,'v_cmp_gt_u32 vcc, 32, v1')
    if p['dty']&1: g.v('buffer_store_dwordx4 v[8:11], v110, s[8:11], 0 offen')
    g.oob(111,'v_cmp_gt_u32 vcc, 16, v1')
    tfl=('buffer_store_dwordx4 v[8:11], v111, s[8:11], 0 offen\n' if p['dty']&2 else '')+'buffer_store_dword v39, v38, s[8:11], 0 offen sc1'
    e('s_waitcnt lgkmcnt(0)\ns_add_u32 s62, s62, 1')
    own_flag(g,38)
    lnp1(g,range(p['ns']),dma,'s27')
    g.st(13)
    if p['tfl']==0: g.w0(tfl,'?fl','?po')
    dma(p['d2'])
    if p['bq']: e('s_barrier')
    e(f"""s_lshl_b32 s34, s31, 20
    s_lshl_b32 s35, s3, 14
    s_add_u32 s34, s34, s35
    s_lshl_b32 s35, s30, 8
    s_add_u32 s34, s34, s35
    s_add_u32 s34, s34, {CC}
    v_lshl_add_u32 v12, v3, 4, s34
    v_lshl_add_u32 v12, v2, 18, v12
    s_lshl_b32 s35, s3, 8
    v_lshl_add_u32 v36, v2, 12, s35
    v_and_b32 v36, {0x3f00 if p['sw'] else 0}, v36
    v_xor_b32 v12, v12, v36
    s_mov_b32 s24, 0x10000
    s_mov_b32 s25, 0x20000
    s_mov_b32 s26, 0x30000
    s_mov_b32 s27, {CXS-CXF}""")
    g.oob(13,'v_cmp_gt_u32 vcc, 16, v1')
    pois(0)
    g.srd(20,44,0 if 'v' in p['x'] else 512*8192)
    e(f"""v_and_b32 v4, 7, v3
    v_lshrrev_b32 v36, 3, v3
    v_lshl_or_b32 v4, v4, 1, v36
    v_lshlrev_b32 v36, 1, v2
    v_xor_b32 v36, v36, v4
    v_lshlrev_b32 v36, 4, v36
    v_lshl_add_u32 v36, v3, 10, v36
    v_add_u32 v40, s96, v36
    v_add_u32 v44, {QL}, v36""")
    dma(2)
    for m in range(1,4): e(f'v_xor_b32 v{40+m}, {(m>>1)*128+(m&1)*16}, v40\nv_xor_b32 v{44+m}, {(m>>1)*128+(m&1)*16}, v44')
    dma(2)
    e(f"""v_lshrrev_b32 v36, 2, v1
    v_and_b32 v37, 7, v36
    v_lshrrev_b32 v64, 5, v1
    v_lshl_or_b32 v37, v37, 1, v64
    v_bfe_u32 v64, v1, 1, 1
    v_xor_b32 v37, v37, v64
    v_lshlrev_b32 v37, 4, v37
    v_lshl_add_u32 v37, v36, 10, v37
    v_and_b32 v64, 1, v1
    v_lshl_add_u32 v37, v64, 3, v37
    s_lshl_b32 s35, s3, 8
    s_and_b32 s34, s96, 0x4000
    s_add_u32 s35, s35, s34
    v_add_u32 v48, s35, v37""")
    dma(2)
    for ct in range(1,8): e(f'v_xor_b32 v{48+ct}, {32*ct}, v48')
    dma(2)
    for ct in range(8): e(f'v_add_u32 v{56+ct}, 0x10000, v{48+ct}')
    dma(2)
    e(f"""s_and_b32 s35, s3, 1
    s_lshl_b32 s35, s35, 7
    s_lshr_b32 s97, s3, 1
    s_lshl_b32 s97, s97, 4
    s_or_b32 s35, s35, s97
    v_xor_b32 v68, s35, v16
    s_lshl_b32 s35, s3, 12
    s_add_u32 s35, s35, {QL}
    v_add_u32 v68, s35, v68""")
    for i in range(1,4): e(f'v_xor_b32 v{68+i}, {32*i}, v68')
    e(f"""s_lshl_b32 s101, s101, 18
    s_lshl_b32 s35, s28, 8
    s_add_u32 s101, s101, s35
    v_lshlrev_b32 v5, 4, v3
    v_lshl_add_u32 v4, v2, 13, v5""")
    def uv(i):
        g.v(f'buffer_load_dwordx4 a[{128+4*i}:{131+4*i}], v4, s[20:23], s101 offen {p["nuv"]}','uv')
        if i<7: e('s_add_u32 s101, s101, 32768')
    dma(32)
    g.st(1)
    pois(1)
    if p['uvat']==0:
        for i in range(8): uv(i)
    ld=lambda so: '\n'.join(f'buffer_load_dwordx4 v[{72+4*i}:{75+4*i}], v{so}, s[8:11], 0 offen offset:{1024*i} sc1' for i in range(4))
    def gath():
        g.wv(f'c{p["gat"]}'); g.wv('f')
        e(f'v_cmp_ne_u32 vcc, s62, v7\ns_cmp_eq_u64 vcc, 0\ns_cselect_b32 s35, 0, {OOB}\nv_or_b32 v18, s35, v15')
        g.v(ld(18)+'\n'+fld,'g')
        g.st(14)
    if p['gat']<15: gath()
    g.wv('c15')
    for m in range(16): e(f'ds_read_b128 v[{128+4*m}:{131+4*m}], v{40+(m&3)} offset:{256*(m>>2)}')
    def trs(t): return [f'ds_read_b64_tr_b16 a[{32*ks+4*ct+2*t}:{32*ks+4*ct+2*t+1}], v{48+ct+8*(ks>>1)} offset:{32768*(ks&1)}' for ks in range(4) for ct in range(8)]
    e('s_barrier')
    if p['tfl']==1: g.w0(tfl,'?fl','?po')
    for x in trs(0): e(x)
    for m in list(range(40,44))+list(range(48,64)): e(f'v_xor_b32 v{m}, 0x4000, v{m}')
    if p['fi']>31: g.wv(f'c{p["fi"]-32}'); g.v(fld,'f')
    if 15<=p['gat']<31: gath()
    g.wv('c31')
    g.st(2)
    for m in range(16): e(f'ds_read_b128 v[{192+4*m}:{195+4*m}], v{40+(m&3)} offset:{256*(m>>2)}')
    if p['gat']==31: gath()
    if p['uvat']==2:
        for i in range(8): uv(i)
    pois(2)
    g.wv('g')
    chk=g.chk(range(72,88),17)
    lf=g.L('t'); lg=g.L('t'); ok=g.L('t')
    e(f's_cmp_lg_u32 s35, 0\ns_cbranch_scc1 {lf}\n'+chk+f'\ns_cbranch_vccnz {lg}\n{ok}:')
    sv=list(g.vm); so_=g.o; g.o=[]
    e(f'{lf}:\nv_cmp_ne_u32 vcc, s62, v7\ns_cbranch_vccz {lg}')
    g.flagpoll(14,7,'tf')
    e(f'{lg}:')
    g.st(3)
    g.poll(ld(15),chk,BIG,'e2')
    e(f's_branch {ok}'); g.vm=sv; g.tail.append('\n'.join(g.o)); g.o=so_
    g.st(9)
    for i in range(4): e(f'ds_write_b128 v{68+i}, v[{72+4*i}:{75+4*i}] offset:{1024*i}')
    pois(3)
    if p['uvat']==3:
        for i in range(8): uv(i)
    e('v_mov_b32 v17, v5\ns_waitcnt lgkmcnt(0)\ns_barrier')
    g.st(4)
    for m in range(16): e(f'ds_read_b128 v[{64+4*m}:{67+4*m}], v{44+(m&3)} offset:{256*(m>>2)}')
    fill=f'''s_lshl_b32 s34, s31, {8 if p['ms'] else 6}
    s_add_u32 s34, s34, s30
    s_lshl_b32 s34, s34, 7
    s_add_u32 s34, s34, {MS}
    v_lshl_add_u32 v19, v3, 3, s34
    v_lshrrev_b32 v36, 2, v3
    v_mul_u32_u24 v36, {8192-32 if p['ms'] else 0}, v36
    v_add_u32 v19, v19, v36
    v_cmp_gt_u32 vcc, 16, v0
    v_cndmask_b32 v19, v6, v19, vcc
    s_lshl_b32 s34, s3, 2
    v_add_u32 v20, {ML}, v17
    v_add_u32 v21, s34, v20
    v_add_u32 v22, {PL}, v16
    s_lshl_b32 s34, s3, 10
    v_add_u32 v23, s34, v22
    v_mov_b32 v25, s62
    v_mov_b32 v27, s62
    v_mov_b32 v28, 0x3f803f80
    v_mov_b32 v29, 0x3f803f80
    v_mov_b32 v30, 0x3f803f80
    v_mov_b32 v31, 0x3f803f80
    s_lshr_b32 s34, s28, {2 if p['ms'] else 4}
    s_lshl_b32 s34, s34, 2
    s_add_u32 s34, s34, s3
    s_lshl_b32 s34, s34, 11
    s_and_b32 s35, s28, {3 if p['ms'] else 15}
    s_lshl_b32 s35, s35, 3
    s_add_u32 s34, s34, s35
    s_add_u32 s34, s34, {MS}
    v_and_b32 v36, 3, v3
    v_lshl_add_u32 v37, v2, 2, v36
    v_lshl_add_u32 v14, v37, 7, s34
    s_and_b32 s35, s63, {63*p['sw']}
    s_lshl_b32 s35, s35, 7
    v_xor_b32 v14, s35, v14
    s_lshl_b32 s34, s63, 14
    s_lshl_b32 s35, s3, 12
    s_add_u32 s34, s34, s35
    s_add_u32 s34, s34, {CC}
    v_lshl_add_u32 v15, v2, 10, s34
    v_add_u32 v15, v15, v17
    s_mov_b32 s97, {LS-MS}'''.split('\n')
    if p['pv']: fill+=['v_and_b32 v12, 0xfff0ff0f, v12','v_lshl_add_u32 v12, v3, 16, v12','v_lshl_add_u32 v12, v2, 4, v12']
    SC=8; tr=trs(1)
    for m in range(16):
        e('s_waitcnt lgkmcnt(15)')
        for t in range(2): g.mfma([8,40][t],128+64*t+4*m,64+4*m,m==0)
        e(tr.pop(0))
        for _ in range(3):
            if fill: e(fill.pop(0))
        if p['uvat']==1 and m&1: uv(m>>1)
    assert not fill
    e(tr.pop(0))
    e('v_max3_f32 v24, v8, v9, v10\nv_max3_f32 v36, v40, v41, v42\nv_max3_f32 v24, v24, v11, v43\nv_max_f32 v24, v24, v36')
    g.allg('v_max_f32',24,36)
    if p['g1']:
        e('v_ceil_f32 v24, v24')
        for r in range(8): e(f'v_sub_f32 v{68+r}, v{[8,9,10,11,40,41,42,43][r]}, v24')
        e('v_mul_f32 v24, 0x43000000, v24\nds_write_b32 v21, v24')
        for r in range(8):
            e(f'v_exp_f32 v{68+r}, v{68+r}')
            for _ in range(2):
                if tr: e(tr.pop(0))
        for r in range(4): e(f'v_cvt_pk_bf16_f32 v{64+r}, v{68+2*r}, v{69+2*r}')
        e('ds_write_b128 v23, v[64:67]')
        if p['tpo']<4: g.wv('po')
        e('s_waitcnt lgkmcnt(0)\ns_barrier')
    else:
        e('ds_write_b32 v21, v24')
        if 'p' not in p['x'] and p['tpo']<4: g.wv('po')
        e('s_waitcnt lgkmcnt(0)\ns_barrier\nds_read_b128 v[44:47], v20')
        for x in tr: e(x)
        e('s_waitcnt lgkmcnt(15)\nv_max3_f32 v24, v44, v45, v46\nv_max_f32 v24, v24, v47')
        g.v('buffer_store_dwordx2 v[24:25], v19, s[8:11], 0 offen sc1')
        SC=68
        for r in range(8): e(f'v_sub_f32 v{SC+r}, v{[8,9,10,11,40,41,42,43][r]}, v24')
        for r in range(8): e(f'v_exp_f32 v{SC+r}, v{SC+r}')
        for r in range(4): e(f'v_cvt_pk_bf16_f32 v{64+r}, v{SC+2*r}, v{SC+1+2*r}')
        e('ds_write_b128 v23, v[64:67]\ns_waitcnt lgkmcnt(0)\ns_barrier')
    g.st(5)
    if p['g1']: e('ds_read_b128 v[116:119], v20')
    for ks in range(4): e(f'ds_read_b128 v[{96+4*ks}:{99+4*ks}], v22 offset:{1024*ks}')
    sub=lambda ks: [f'v_pk_sub_u16 v{96+4*ks+r}, v{96+4*ks+r}, v{120+(ks>>1)} op_sel:[0,{ks&1}] op_sel_hi:[1,{ks&1}] clamp' for r in range(4)]
    dl=lambda k: [f'v_sub_f32 v{116+k}, v24, v{116+k}',f'v_sub_f32 v{117+k}, v24, v{117+k}',f'v_cvt_u32_f32 v{116+k}, v{116+k}',f'v_cvt_u32_f32 v{117+k}, v{117+k}',f'v_cvt_pk_u16_u32 v{120+(k>>1)}, v{116+k}, v{117+k}']
    if p['g1']: e('s_waitcnt lgkmcnt(4)\nv_max3_f32 v24, v116, v117, v118\nv_max_f32 v24, v24, v119\n'+'\n'.join(dl(0))+'\ns_waitcnt lgkmcnt(3)\n'+'\n'.join(sub(0)))
    fill=f'''v_and_b32 v36, 1, v2
    s_and_b32 s34, s3, 1
    s_lshl_b32 s34, s34, 7
    {'v_lshlrev_b32 v37, 6, v2' if p['pv'] else 'v_lshl_or_b32 v37, v36, 5, s34'}
    v_xor_b32 v37, v37, v17
    v_lshl_add_u32 v37, v2, 8, v37
    s_lshl_b32 s34, s3, 13
    v_add_u32 v40, s34, v37
    v_xor_b32 v41, {32 if p['pv'] else 64}, v40
    v_lshrrev_b32 v37, 2, v3
    v_lshl_add_u32 v36, v37, 1, v36
    v_lshlrev_b32 v36, 5, v36
    s_lshl_b32 s34, s3, 6
    v_xor_b32 v36, s34, v36
    v_and_b32 v38, 3, v3
    v_lshl_add_u32 v36, v38, 3, v36
    v_lshl_add_u32 v36, v2, {10 if p['pv'] else 8}, v36
    v_lshl_add_u32 v42, v37, {8 if p['pv'] else 12}, v36
    v_xor_b32 v43, 32, v42
    s_lshl_b32 s34, s3, 8
    s_add_u32 s34, s34, {SL}
    v_and_b32 v36, 1, v2
    v_lshl_add_u32 v36, v36, 3, v17
    v_add_u32 v44, s34, v36
    v_lshlrev_b32 v45, 8, v38
    v_lshl_add_u32 v45, v2, 4, v45
    v_add_u32 v45, {SL}, v45
    s_lshl_b32 s34, s3, 2
    s_add_u32 s34, s34, {SL+1024}
    v_mov_b32 v46, s34
    v_mov_b32 v47, {SL+1024}'''.split('\n')
    msl='buffer_load_dwordx2 v[48:49], v14, s[8:11], 0 offen sc1'; msc='v_cmp_ne_u32 vcc, s62, v49'
    def ccs(k):
        for c in range(4): e(f'v_cvt_pk_bf16_f32 v{128+4*k+c}, v{64+8*k+2*c}, v{65+8*k+2*c}')
        g.v(f'buffer_store_dwordx4 v[{128+4*k}:{131+4*k}], v12, s[8:11], 0 offen offset:{64*k} sc1')
        if k==0: e('v_mov_b32 v26, v112'); g.v('buffer_store_dwordx2 v[26:27], v19, s[8:11], s97 offen sc1')
    if p['pv']:
        for k in range(4):
            for ks in range(4):
                if k==0: e(f's_waitcnt lgkmcnt({3-ks})'); g.mfma(112,28,96+4*ks,ks==0)
                for t in range(2):
                    g.mfma(64+8*k+4*t,32*ks+8*k+4*t,96+4*ks,ks==0,ak='a')
                    if ks!=1:
                        for _ in range(2):
                            if fill: e(fill.pop(0))
                if k and ks==0: ccs(k-1)
        ccs(3)
        assert not fill
    else:
        for ks in range(4):
            if not p['g1']: e(f's_waitcnt lgkmcnt({3-ks})')
            elif ks<3: fill[0:0]=(dl(2)+['v_mul_f32 v24, 0x3c000000, v24'] if ks==0 else [])+[f's_waitcnt lgkmcnt({2-ks})']+sub(ks+1)
            g.mfma(112,28,96+4*ks,ks==0)
            if p['g1'] and ks==1: g.v('buffer_store_dwordx2 v[24:25], v19, s[8:11], 0 offen sc1')
            for ct in range(8):
                g.mfma(64+4*ct,96+4*ks,32*ks+4*ct,ks==0,bk='a')
                for _ in range(2):
                    if fill: e(fill.pop(0))
        assert not fill
        if p['me']==3: g.v(msl,'ms')
        e('v_mov_b32 v26, v112')
        for r in range(4):
            for c in range(4): e(f'v_cvt_pk_bf16_f32 v{128+4*r+c}, v{64+8*c+r}, v{68+8*c+r}')
            if r: e(f'v_xor_b32 v36, {1024*r*p["sw"]}, v12')
            g.v(f'buffer_store_dwordx4 v[{128+4*r}:{131+4*r}], v{36 if r else 12}, s[8:11], {so[r]} offen {p["csc"].replace("_"," ")}')
            if r==0: g.v('buffer_store_dwordx2 v[26:27], v19, s[8:11], s97 offen sc1')
    g.st(6)
    if p['me']==1: g.v(msl)
    g.wv('uv')
    if p['me']==2: g.v(msl)
    for i in range(8): e(f'ds_write_b128 v{40+(i&1 if p["pv"] else i>>2)}, a[{128+4*i}:{131+4*i}] offset:{1024*i}')
    e('s_waitcnt lgkmcnt(0)\ns_barrier')
    for ks in range(4):
        for dt in range(2):
            for eh in range(2):
                r=160+8*ks+4*dt+2*eh
                e(f'ds_read_b64_tr_b16 v[{r}:{r+1}], v{42+dt} offset:{4096*eh+8192*ks if p["pv"] else 16384*eh+1024*ks}')
    l=g.L('me')
    if p['me']: g.wv('ms' if p['me']==3 else None); e(msc+f'\ns_cbranch_vccz {l}')
    g.poll(msl,msc,BIG,'e3s'); e(f'{l}:')
    g.st(7)
    a=g.L('e3'); b=g.L('e3')
    e(f's_mov_b32 s33, {BIG}\n{a}:\ns_sub_u32 s33, s33, 1\ns_cbranch_scc1 {b}')
    for i in range(4): g.v(f'buffer_load_dwordx4 v[{64+4*i}:{67+4*i}], v15, s[8:11], 0 offen offset:{256*i} sc1')
    g.v('buffer_load_dwordx2 v[50:51], v14, s[8:11], s97 offen sc1')
    g.dpp('v_max_f32',52,48,48,'quad_perm:[1,0,3,2]'); g.dpp('v_max_f32',52,52,52,'quad_perm:[2,3,0,1]')
    g.allg('v_max_f32',52,36)
    e('v_sub_f32 v53, v48, v52\nv_exp_f32 v53, v53\nv_cvt_pk_bf16_f32 v53, v53, v53')
    for i in range(4):
        for r in range(4): g.dpp('v_and_b32',80+4*i+r,53,32+r,f'row_newbcast:{i}')
    e('v_and_b32 v53, 0xffff0000, v53')
    g.wv()
    m3=[mf(56+4*(i&1),80+4*i,64+4*i,None if i<2 else 56+4*(i&1)) for i in range(4)]
    e(ilv(m3 if p['il']&1 else [],'v_cmp_ne_u32 s[98:99], s62, v51\n'+g.chk(range(64,80),7)+'\ns_or_b64 vcc, vcc, s[98:99]',3))
    e(f's_cbranch_vccnz {a}\n{b}:')
    g.st(8)
    if not p['il']&1: e('\n'.join(m3))
    e('v_mul_f32 v53, v53, v50')
    g.dpp('v_add_f32',53,53,53,'quad_perm:[1,0,3,2]'); g.dpp('v_add_f32',53,53,53,'quad_perm:[2,3,0,1]')
    g.allg('v_add_f32',53,36)
    e('''ds_write2_b32 v46, v52, v53 offset0:0 offset1:4
    v_pk_add_f32 v[56:57], v[56:57], v[60:61]
    v_pk_add_f32 v[58:59], v[58:59], v[62:63]
    v_cvt_pk_bf16_f32 v56, v56, v57
    v_cvt_pk_bf16_f32 v57, v58, v59
    ds_write_b64 v44, v[56:57]
    s_waitcnt lgkmcnt(0)
    s_barrier''')
    if p['il']&2:
        e('ds_read_b128 v[64:67], v45\nds_read_b128 v[80:83], v47\nds_read_b128 v[68:71], v45 offset:64\nds_read_b128 v[84:87], v47 offset:16\nds_read_b128 v[72:75], v45 offset:128\nds_read_b128 v[76:79], v45 offset:192')
        W=['s_waitcnt lgkmcnt(5)\n','','s_waitcnt lgkmcnt(3)\n','','s_waitcnt lgkmcnt(1)\n','','s_waitcnt lgkmcnt(0)\n','']
        m=[W[2*ks+dt]+mf(56+4*dt,64+4*ks,160+8*ks+4*dt,56+4*dt if ks else None) for ks in range(4) for dt in range(2)]
        c=['s_waitcnt lgkmcnt(4)\nv_max3_f32 v52, v80, v81, v82','v_max_f32 v52, v52, v83\nv_sub_f32 v80, v80, v52\nv_sub_f32 v81, v81, v52',
           'v_exp_f32 v80, v80\nv_sub_f32 v82, v82, v52','v_exp_f32 v81, v81\nv_sub_f32 v83, v83, v52','v_exp_f32 v82, v82\nv_mul_f32 v53, v80, v84','v_exp_f32 v83, v83\nv_fmac_f32 v53, v81, v85',
           'v_fmac_f32 v53, v82, v86\nv_fmac_f32 v53, v83, v87','v_rcp_f32 v53, v53']
        for x,y in zip(m,c): e(x); e(y)
        e('''v_pk_mul_f32 v[56:57], v[56:57], v[80:81]
        v_pk_fma_f32 v[56:57], v[58:59], v[82:83], v[56:57]
        v_pk_mul_f32 v[60:61], v[60:61], v[80:81]
        v_add_f32 v54, v56, v57
        v_pk_fma_f32 v[60:61], v[62:63], v[82:83], v[60:61]
        v_mul_f32 v54, v54, v53
        v_add_f32 v55, v60, v61
        v_mul_f32 v55, v55, v53
        v_cvt_pk_bf16_f32 v54, v54, v55''')
    else:
        for ks in range(4): e(f'ds_read_b128 v[{64+4*ks}:{67+4*ks}], v45 offset:{64*ks}')
        e('ds_read_b128 v[80:83], v47\nds_read_b128 v[84:87], v47 offset:16')
        for ks in range(4):
            e(f's_waitcnt lgkmcnt({5-ks})')
            for dt in range(2): g.mfma(56+4*dt,64+4*ks,160+8*ks+4*dt,ks==0)
        e('s_waitcnt lgkmcnt(0)\nv_max3_f32 v52, v80, v81, v82\nv_max_f32 v52, v52, v83')
        for r in range(4): e(f'v_sub_f32 v{80+r}, v{80+r}, v52')
        for r in range(4): e(f'v_exp_f32 v{80+r}, v{80+r}')
        e('v_mul_f32 v53, v80, v84\nv_fmac_f32 v53, v81, v85\nv_fmac_f32 v53, v82, v86\nv_fmac_f32 v53, v83, v87\nv_rcp_f32 v53, v53')
        e('v_mul_f32 v54, v80, v56\nv_mul_f32 v55, v80, v60')
        for r in range(1,4): e(f'v_fmac_f32 v54, v{80+r}, v{56+r}\nv_fmac_f32 v55, v{80+r}, v{60+r}')
        e('v_mul_f32 v54, v54, v53\nv_mul_f32 v55, v55, v53\nv_cvt_pk_bf16_f32 v54, v54, v55')
    g.v('buffer_store_dword v54, v13, s[8:11], 0 offen '+p.get('fsc','')+'\nbuffer_store_dword v54, v13, s[8:11], s27 offen sc1')
    g.fin()

def gen(**kw):
    g=G(**kw)
    pre(g)
    for r in ('TUOFZ' if g.p['tf'] else 'UOFZT'): g.role=r; globals()[r+'part'](g)
    body=fix('\n'.join(g.o))
    ref=open(f'cdna_kernels/{NAME}.s.ref').read()
    a,b=ref.split(f'{NAME}_kernel:\n'); b=b[b.index('s_endpgm'):]
    a=a.replace('grid=(3,1,1) block=(256,1,1) lds=0',f'grid=(256,1,1) block=(256,1,1) lds={LDS}')
    b=b.replace('next_free_vgpr 256','next_free_vgpr 512')
    return a+f'{NAME}_kernel:\n'+body+'\nLEND:\n'+b
if __name__=='__main__':
    kw={}
    for x in sys.argv[2:]:
        k,v=x.split('='); kw[k]=int(v) if v.lstrip('-').isdigit() else v
    open(sys.argv[1],'w').write(gen(**kw))
```

```python
import sys, math, struct
sys.path.insert(0,'exp')
from asmfix import fix
NAME='sequential_preLN__compressed_kv_cla__glu_gated_geglu__decode'
FL=0x1000; FL2=0x300000; Q1F=0x100000; Q1S=0x180000; QA=0x90000; MS=0x98000; LS=0x9C000
CXF=0xA0000; CXS=0xA8000; OP=0xE0000; FP=0xC0000; CC=0x200000; DBG=0x400000
WSN=0x800000; OOB=0x7ff00000; LDS=155648
def fl(x): return '0x%08x'%struct.unpack('<I',struct.pack('<f',x))[0]
DEF=dict(dbg=0, nq='', nuk='', nc='', nuv='', no='', nf='', nfast=64, cwin=16, tpo=3, uvat=1, fi=24, gat=28, d0=1, d1=0, dq=3, d2=2, tf=1, x='', pf=32, opre=0, fpre=0, hu=0, dty=0, dry='x', bq=1, fh=1, qm=0, orev=0, frev=0, tw=0, tfl=1, fw=0, ow=0, uk0=0, uk1=8, ufl=0, rev=1, pfl=3, ms=0, oc=1, sw=0, me=0, pv=0, pu=1, npu='', ns=10, ua=0, puh=0, g1=0, il=31, po=0, pff=0, csc='sc1')
class G:
    def __init__(s,**kw):
        s.o=[]; s.p=dict(DEF); s.p.update(kw); s.vm=[]; s.lab=0; s.seen=set(); s.ns=0; s.tail=[]
    def e(s,t):
        for l in t.strip('\n').split('\n'):
            l=l.strip()
            if l: s.o.append(l if l.endswith(':') else '  '+l)
    def v(s,t,tag=None):
        for l in t.strip('\n').split('\n'):
            if l.strip(): s.e(l); s.vm.append(tag); s.seen.add(tag)
    def wv(s,tag=None,extra=''):
        if tag is None: n=0
        else:
            assert tag in s.seen
            if tag not in s.vm: return
            idx=max(i for i,t in enumerate(s.vm) if t==tag); s.vm=s.vm[idx+1:]
            n=sum(1 for t in s.vm if not (t or '').startswith('?'))
        assert n<64
        s.e(f's_waitcnt vmcnt({n}) {extra}')
        if n==0: s.vm=[]
    def w0(s,t,tag,wait=None):
        a=s.L('w'); s.e(f's_cmp_lg_u32 s3, 0\ns_cbranch_scc1 {a}')
        if wait: sv=list(s.vm); s.wv(wait); s.vm=sv
        s.v(t,tag); s.e(f'{a}:')
    def dry0(s,n):
        if n in s.p['dry']: s.e(f's_mov_b32 s7, 1\ns_branch LD{n}a\nLD{n}r:\ns_nop 7\ns_nop 7')
    def dry1(s,n):
        if n in s.p['dry']: s.e(f'LD{n}a:')
    def dry2(s,n):
        if n in s.p['dry']: s.e(f's_cmp_eq_u32 s7, 1\ns_mov_b32 s7, 0\ns_cbranch_scc1 LD{n}r')
    def L(s,n): s.lab+=1; return f'L{n}_{s.lab}'
    def st(s,k):
        if s.p.get('probe')==f'{s.role}{k}': s.e('s_memrealtime s[68:69]\ns_waitcnt lgkmcnt(0)\ns_sub_u32 s70, s68, s64\ns_add_u32 s70, s70, 1500')
        if s.p['dbg'] and (k==15 or '%x'%k in s.p.get('s'+s.role,'123456789abcde')): s.e(f's_memrealtime s[{64+2*k}:{65+2*k}]\ns_waitcnt lgkmcnt(0)')
    def srd(s,d,p,n): s.e(f's_mov_b32 s{d}, s{p}\ns_mov_b32 s{d+1}, s{p+1}\ns_mov_b32 s{d+2}, {n}\ns_mov_b32 s{d+3}, 0x20000')
    def masks(s,m,t):
        s.e(f'v_and_b32 v{t}, 1, v3\nv_lshlrev_b32 v{t}, 4, v{t}\nv_lshlrev_b32 v{t}, v{t}, v5\nv_bfe_u32 v{t+1}, v3, 1, 2')
        for r in range(4): s.e(f'v_cmp_eq_u32 vcc, {r}, v{t+1}\nv_cndmask_b32 v{m+r}, 0, v{t}, vcc')
    def oob(s,d,cond):
        s.e(f'{cond}\nv_cndmask_b32 v{d}, v6, v{d}, vcc')
    def poll(s,loads,check,lim,name,ex=None):
        a=s.L(name); b=ex or s.L(name)
        s.e(f's_mov_b32 s33, {lim}\n{a}:\ns_sub_u32 s33, s33, 1\ns_cbranch_scc1 {b}'); s.v(loads); s.wv(); s.e(check)
        s.e(f's_cbranch_vccnz {a}'+('' if ex else f'\n{b}:'))
    def dual(s,ld,chk,n):
        a=s.L(n); ok=s.L(n); sl=s.L(n)
        s.e(f's_mov_b32 s32, {BIG>>3}\n{a}:')
        s.poll(ld(0),chk,s.p['nfast'],n,sl); s.e(f'{ok}:')
        s.tail.append(f'{sl}:\n'+ld('s35')+'\ns_waitcnt vmcnt(0)\n'+chk+f'\ns_cbranch_vccz {ok}\ns_sub_u32 s32, s32, 1\ns_cbranch_scc0 {a}\ns_branch {ok}')
    def flagpoll(s,a,d,name):
        s.poll(f'buffer_load_dword v{d}, v{a}, s[8:11], 0 offen sc1', f'v_cmp_ne_u32 vcc, s62, v{d}', BIG, name)
    def flagpre(s,a,d): s.v(f'buffer_load_dword v{d}, v{a}, s[8:11], 0 offen sc1','pfl')
    def flagchk(s,a,d,name):
        l=s.L(name); s.wv(); s.e(f'v_cmp_ne_u32 vcc, s62, v{d}\ns_cbranch_vccz {l}'); s.flagpoll(a,d,name); s.e(f'{l}:')
    def chk(s,regs,t):
        r=list(regs); o=''
        cur=r.pop(0)
        while r:
            if len(r)>=2: o+=f'v_max3_u32 v{t}, v{cur}, v{r.pop(0)}, v{r.pop(0)}\n'
            else: o+=f'v_max_u32 v{t}, v{cur}, v{r.pop(0)}\n'
            cur=t
        return o+f'v_cmp_eq_u32 vcc, -1, v{t}'
    def mfma(s,d,a,b,first,ak='v',bk='v'):
        s.e(f'v_mfma_f32_16x16x32_bf16 v[{d}:{d+3}], {ak}[{a}:{a+3}], {bk}[{b}:{b+3}], '+('0' if first else f'v[{d}:{d+3}]'))
    def allg(s,op,x,t):
        s.e(f'v_mov_b32 v{t}, v{x}\nv_permlane32_swap_b32 v{x}, v{t}\n{op} v{x}, v{x}, v{t}\nv_mov_b32 v{t}, v{x}\nv_permlane16_swap_b32 v{x}, v{t}\n{op} v{x}, v{x}, v{t}')
    def dpp(s,op,d,a,b,c): s.e(f'{op}_dpp v{d}, v{a}, v{b} {c} row_mask:0xf bank_mask:0xf')
    def fin(s):
        if s.p.get('probe'): s.st(15); s.p['spin']='s70'
        if s.p.get('spin'):
            a=s.L('sp'); s.e(f's_mov_b32 s33, 100000\n{a}:\ns_memrealtime s[66:67]\ns_waitcnt lgkmcnt(0)\ns_sub_u32 s66, s66, s64\ns_sub_u32 s33, s33, 1\ns_cselect_b32 s66, -1, s66\ns_cmp_lt_u32 s66, {s.p["spin"]}\ns_cbranch_scc1 {a}')
        if s.p['dbg']:
            s.st(15)
            s.e(f's_lshl_b32 s34, s2, 2\ns_add_u32 s34, s34, s3\ns_lshl_b32 s34, s34, 6\ns_add_u32 s34, s34, {DBG}\ns_mov_b64 exec, 1\nv_mov_b32 v1, s34')
            for k in range(16): s.e(f'v_mov_b32 v2, s{64+2*k}\nbuffer_store_dword v2, v1, s[8:11], 0 offen offset:{4*k}')
        s.e('s_endpgm'); s.vm=[]
        while s.tail: s.e(s.tail.pop())
BIG=1<<15
def mf(d,a,b,c): return f'v_mfma_f32_16x16x32_bf16 v[{d}:{d+3}], v[{a}:{a+3}], v[{b}:{b+3}], '+('0' if c is None else f'v[{c}:{c+3}]')
def ilv(m,c,n):
    c=c.split('\n'); o=[]
    for x in m: o.append(x); o+=c[:n]; c=c[n:]
    return '\n'.join(o+c)

def pre(g):
    e=g.e
    e('s_cmp_ge_u32 s2, 256\ns_cbranch_scc1 LEND')
    if g.p['dbg'] or g.p.get('spin') or g.p.get('probe'):
        for k in range(16): e(f's_mov_b32 s{64+2*k}, 0')
        e('s_memrealtime s[64:65]')
    e('s_load_dwordx16 s[36:51], s[0:1], 0\ns_load_dwordx2 s[60:61], s[0:1], 96\ns_load_dwordx8 s[52:59], s[0:1], 64')
    if g.p['pf']:
        if g.p['pf']>1: e(f's_cmp_ge_u32 s2, {g.p["pf"]}\ns_cbranch_scc1 LNP')
        e('s_getpc_b64 s[6:7]\nLPC:\nv_lshlrev_b32 v7, 7, v0\nv_min_u32 v7, LEND-LPC, v7')
        g.v('global_load_dword v255, v7, s[6:7]')
        e('LNP:')
    e('''v_lshrrev_b32 v7, 6, v0
    v_and_b32 v1, 63, v0
    v_readfirstlane_b32 s3, v7
    v_bfe_u32 v2, v0, 4, 2
    v_and_b32 v3, 15, v0
    v_mov_b32 v5, 0xffff
    v_mov_b32 v6, %d
    v_mov_b32 v8, -1
    v_mov_b32 v9, -1
    v_mov_b32 v10, -1
    v_mov_b32 v11, -1
    s_and_b32 s4, s2, 7
    s_lshr_b32 s5, s2, 3
    s_bfe_u32 s28, s2, 0x20005
    s_lshl_b32 s29, s4, 2
    s_add_u32 s28, s28, s29
    s_and_b32 s29, s5, 3
    s_mov_b32 s10, %d
    s_mov_b32 s11, 0x20000
    s_cmp_ge_u32 s5, 16
    %s'''%(OOB,WSN,'s_cbranch_scc0 LU' if g.p['tf'] else 's_cbranch_scc1 LT'))

def own_flag(g,t):
    g.e(f's_lshl_b32 s34, s2, 7\ns_add_u32 s34, s34, {FL}\nv_mov_b32 v{t}, s34\nv_mov_b32 v{t+1}, s62')
    g.oob(t,'v_cmp_eq_u32 vcc, 0, v0')

HS=4096+256
def hu_addr(g,t):
    g.e(f's_mul_i32 s34, s2, {HS}\ns_add_u32 s34, s34, {FL2}\nv_mov_b32 v{t}, s34\nv_mov_b32 v{t+1}, s62')
    g.oob(t,'v_cmp_eq_u32 vcc, 0, v0')
def hupoll(g,a,d,n,name):
    l=g.L('h'); g.e(f'v_mul_u32_u24 v{a}, {HS}, v{a}\ns_mov_b32 s97, {FL2}\ns_cmp_lg_u32 s3, 0\ns_cbranch_scc1 {l}\ns_mov_b64 exec, {(1<<n)-1}')
    g.poll(f'buffer_load_dword v{d}, v{a}, s[8:11], s97 offen sc1', f'v_cmp_ne_u32 vcc, s62, v{d}', BIG, name)
    g.e(f's_mov_b64 exec, -1\n{l}:\ns_barrier')
def lnp1(g,R,dma,so):
    e=g.e; p=g.p
    e('v_mov_b32 v105, s62\nv_mov_b32 v107, s62\nv_mov_b32 v92, 0\nv_mov_b32 v93, 0')
    g.wv('x')
    g.st(11)
    for i in sorted({i>>1 for i in R}): e(f'ds_bpermute_b32 v{77+i}, v108, v{72+i}')
    dma(p['d1'])
    for i in range(5): e(f'v_dot2c_f32_bf16 v92, v{72+i}, v94\nv_dot2c_f32_bf16 v93, v{72+i}, v{72+i}')
    for c in ['row_ror:8','row_ror:4','row_ror:2','row_ror:1']:
        g.dpp('v_add_f32',92,92,92,c); g.dpp('v_add_f32',93,93,93,c)
    e("""v_permlane32_swap_b32 v92, v93
    v_add_f32 v92, v92, v93
    v_mov_b32 v93, v92
    v_permlane16_swap_b32 v92, v93
    v_add_f32 v92, v92, v93
    v_mov_b32 v93, v92
    v_permlane32_swap_b32 v92, v93
    s_waitcnt lgkmcnt(0)""")
    up=[(f'v_lshlrev_b32 v{82+2*i}, 16, v{77+i}\n' if 2*i in R else '')+(f'v_and_b32 v{83+2*i}, 0xffff0000, v{77+i}' if 2*i+1 in R else '') for i in range(5)]
    e(f"""v_mul_f32 v92, {fl(1/640)}, v92
    v_mul_f32 v93, {fl(1/640)}, v93
    {up[0]}
    v_fma_f32 v93, -v92, v92, v93
    {up[1]}
    v_max_f32 v93, 0, v93
    {up[2]}
    v_add_f32 v93, {fl(1e-5)}, v93
    {up[3]}
    v_rsq_f32 v93, v93
    {up[4]}
    v_mul_f32 v92, v92, v93""")
    for i in R: e(f'v_fma_f32 v{82+i}, v{82+i}, v93, -v92')
    for i in R: e(f'v_cvt_pk_bf16_f32 v{82+i}, v{82+i}, v{82+i}')
    for i in R:
        for r in range(4): e(f'v_and_b32 v{168+4*i+r}, v{82+i}, v{32+r}')
    g.st(12)
    for i in R:
        g.wv(f'q{i}'); g.mfma(96+4*(i&1),168+4*i,128+4*i,i<R[0]+2)
        if i<p['dq']: dma(1)
    e('v_pk_add_f32 v[96:97], v[96:97], v[100:101]\nv_pk_add_f32 v[98:99], v[98:99], v[102:103]')
    e('v_cvt_pk_bf16_f32 v104, v96, v97\nv_cvt_pk_bf16_f32 v106, v98, v99')
    g.v(f'buffer_store_dwordx4 v[104:107], v110, s[8:11], 0 offen'+('' if so=='s35' and 's' in p['x'] else f'\nbuffer_store_dwordx4 v[104:107], v110, s[8:11], {so} offen sc1'))
def Upart(g):
    e=g.e; p=g.p
    e('.p2align 6\nLU:' if p['tf'] else 'LU:'); g.vm=[None]
    e(f'''s_lshl_b32 s30, s29, 2
    s_add_u32 s30, s30, s3
    s_lshl_b32 s34, s28, 8
    s_lshl_b32 s32, s30, 18
    s_add_u32 s32, s32, s34
    v_lshrrev_b32 v15, 5, v1
    v_xor_b32 v15, v15, v3
    v_lshlrev_b32 v15, 4, v15
    v_lshl_add_u32 v208, v2, 13, v15
    s_mul_i32 s99, s30, {40*8192}
    s_add_u32 s99, s99, s34
    s_add_u32 s99, s99, {8192*p['ns']}
    v_mul_u32_u24 v108, 20, v1
    v_mul_u32_u24 v109, 81920, v2
    v_lshl_add_u32 v109, v3, 4, v109
    s_lshl_b32 s34, s28, 14
    s_add_u32 s34, s34, {Q1F}
    s_lshl_b32 s35, s3, 7
    s_add_u32 s35, s35, s34
    v_lshlrev_b32 v16, 9, v3
    v_lshl_add_u32 v16, v2, 5, v16
    v_add_u32 v16, s35, v16
    v_add_u32 v17, 8192, v16
    s_lshl_b32 s35, s30, 9
    s_add_u32 s98, s34, s35
    s_lshl_b32 s100, s3, 13''')
    for i in range(1,8): e(f'v_xor_b32 v{208+i}, {32*i}, v208')
    if p['pu']: e('v_lshrrev_b32 v115, 1, v1\nv_lshl_add_u32 v115, v115, 13, s32\nv_and_b32 v15, 1, v1\nv_lshl_add_u32 v115, v15, 7, v115')
    if p['puh']: g.oob(115,f'v_cmp_le_u32 vcc, {p["puh"]}, v1')
    e('s_waitcnt lgkmcnt(0)')
    g.st(10)
    sp=p['ns']<10; PO='po' if p['ua'] else '?po'
    e('s_load_dword s62, s[60:61], 0'); g.srd(12,36,1280)
    if sp:
        g.srd(16,40,640*8192)
        g.v('buffer_load_dwordx4 v[72:75], v108, s[12:15], 0 offen\nbuffer_load_dword v76, v108, s[12:15], 0 offen offset:16','x')
        for i in range(p['ns'],10):
            g.v(f'buffer_load_dwordx4 v[{128+4*i}:{131+4*i}], v109, s[16:19], s99 offen {p["nq"]}',f'q{i}')
            if i<9: e('s_add_u32 s99, s99, 8192')
    e('s_mov_b32 s8, s60\ns_mov_b32 s9, s61'); g.srd(20,42,512*8192)
    if not p['dty']&1: g.v('buffer_load_dword v26, v16, s[8:11], 0 offen sc1','pre')
    if not p['dty']&1 and sp: g.v('buffer_load_dword v25, v17, s[8:11], 0 offen sc1','pre')
    def ukl(a,b):
        for i in range(a,b):
            e(f's_mov_b32 m0, s100\ns_add_u32 s100, s100, 1024')
            g.v(f'buffer_load_dwordx4 v{208+i}, s[20:23], s32 offen {p["nuk"]} lds',f'uk{i}')
            if i<7: e('s_add_u32 s32, s32, 32768')
    ukl(0,p['uk0'])
    e(f'''s_lshl_b32 s34, s28, 10
    s_lshl_b32 s35, s30, 6
    s_add_u32 s34, s34, s35
    s_add_u32 s34, s34, {QA}
    v_lshl_add_u32 v18, v3, 2, s34''')
    g.oob(18,'v_cmp_gt_u32 vcc, 16, v1')
    e(f'''s_lshl_b32 s63, s4, 3
    s_add_u32 s63, s63, s5
    s_lshl_b32 s96, s63, 8
    s_add_u32 s96, s96, {OP}
    s_sub_u32 s63, s63, 8
    s_mul_i32 s34, s63, 1280
    s_add_u32 s34, s34, {FP}
    s_cmp_lt_u32 s63, 54
    s_cselect_b32 s35, 1280, 0
    s_cmp_lt_u32 s5, 8
    s_cselect_b32 s96, s96, s34
    s_cselect_b32 s35, 256, s35
    s_lshl_b32 s34, s28, 10
    s_lshl_b32 s97, s29, 8
    s_add_u32 s34, s34, s97
    s_add_u32 s34, s34, {QA-256}
    s_add_u32 s97, s96, 1024
    s_cmp_eq_u32 s35, 1280
    s_cselect_b32 s97, s97, {OOB}
    s_min_u32 s35, s35, 1024
    v_lshlrev_b32 v27, 4, v0
    v_cmp_gt_u32 vcc, s35, v27
    v_add_u32 v19, s96, v27
    v_cndmask_b32 v19, v6, v19, vcc
    v_add_u32 v60, s97, v27
    v_add_u32 v61, s34, v27
    v_cmp_gt_u32 vcc, 16, v0
    v_cndmask_b32 v60, v61, v60, vcc
    v_cmp_gt_u32 vcc, 32, v0
    v_cndmask_b32 v60, v6, v60, vcc
''')
    if p['oc']: e('s_lshl_b32 s34, s3, 3\ns_add_u32 s34, s34, s5\ns_cmp_lt_u32 s34, 8\ns_cselect_b64 vcc, -1, 0\nv_lshl_add_u32 v63, v2, 14, s96\nv_lshl_add_u32 v63, v3, 4, v63\nv_cndmask_b32 v19, v19, v63, vcc\nv_add_u32 v63, 0x10000, v63\nv_cndmask_b32 v63, v6, v63, vcc')
    (g.v if p['ua'] else g.w0)('buffer_store_dwordx4 v[8:11], v60, s[8:11], 0 offen sc1\nbuffer_store_dwordx4 v[8:11], v19, s[8:11], 0 offen sc1'+('\nbuffer_store_dwordx4 v[8:11], v63, s[8:11], 0 offen sc1' if p['oc'] else ''),PO)
    g.masks(32,36)
    e('s_waitcnt lgkmcnt(0)\ns_add_u32 s62, s62, 1')
    own_flag(g,38)
    e('s_lshl_b32 s34, s3, 13\nv_xor_b32 v40, v2, v3\nv_lshlrev_b32 v40, 4, v40\nv_lshl_add_u32 v40, v3, 9, v40\nv_add_u32 v40, s34, v40')
    for ks in range(1,4): e(f'v_xor_b32 v{40+ks}, {64*ks}, v40')
    e(f's_lshl_b32 s34, s3, 10\nv_lshlrev_b32 v44, 4, v1\nv_add_u32 v45, s34, v44\nv_add_u32 v45, 0x8000, v45\ns_mov_b32 s35, {Q1S-Q1F}')
    chk='v_xor_b32 v46, s62, v21\nv_xor_b32 v47, s62, v23\nv_xor_b32 v28, s62, v25\nv_xor_b32 v29, s62, v27\nv_or3_b32 v46, v46, v47, v28\nv_or_b32 v46, v46, v29\nv_cmp_ne_u32 vcc, 0, v46'
    ld=lambda so: f'buffer_load_dwordx4 v[20:23], v16, s[8:11], {so} offen sc1\nbuffer_load_dwordx4 v[24:27], v16, s[8:11], {so} offen offset:16 sc1'
    if p['uk0']<8:
        ukl(p['uk0'],p['uk1'])
        if p['uk1']<8: g.wv('pre')
        g.st(3); ukl(p['uk1'],8)
    if p['tw']&1:
        e(f'''s_mul_i32 s34, s4, 655360
        s_cmp_eq_u32 s3, 0
        s_cselect_b32 s34, s34, 0
        s_movk_i32 s33, 10240
        s_cselect_b32 s33, s33, 34560
        s_mov_b32 s26, {32*163840}
        s_cselect_b32 s26, s26, {640*3456}
        s_cselect_b64 s[24:25], s[46:47], s[50:51]
        s_cmp_eq_u32 s3, 2
        s_cselect_b64 s[24:25], s[52:53], s[24:25]
        s_cmp_eq_u32 s3, 3
        s_cselect_b64 s[24:25], s[54:55], s[24:25]
        s_mov_b32 s27, 0x20000
        v_mul_lo_u32 v31, v1, s33''')
        g.v('buffer_load_dword v254, v31, s[24:27], s34 offen')
    if sp:
        e('s_add_u32 s98, s98, 8192\nv_lshlrev_b32 v110, 5, v3\nv_lshl_add_u32 v110, v2, 4, v110\nv_add_u32 v110, s98, v110\ns_lshl_b32 s34, s30, 4\nv_lshl_add_u32 v108, v2, 2, s34\nv_mov_b32 v94, 0x3f803f80')
        g.oob(110,'v_cmp_gt_u32 vcc, 32, v1')
        lnp1(g,range(p['ns'],10),lambda n: None,'s35')
        g.st(13)
    if p['tpo']==4:
        e(f's_lshl_b32 s34, s28, 2\ns_add_u32 s34, s34, s29\ns_lshl_b32 s34, s34, 14\ns_add_u32 s34, s34, {CC}\nv_lshl_add_u32 v62, v1, 4, s34\ns_movk_i32 s24, 4096\ns_movk_i32 s25, 8192\ns_movk_i32 s26, 12288')
        g.w0('\n'.join(f'buffer_store_dwordx4 v[8:11], v62, s[8:11], {["0","s24","s25","s26"][i>>2]} offen offset:{1024*(i&3)} sc1' for i in range(16)),'?po')
    if p['ufl']==0: g.w0('buffer_store_dword v39, v38, s[8:11], 0 offen sc1','?fl',PO)
    for i in range(3):
        e(f'''v_add_u32 v12, {64*i}, v1
        v_mul_u32_u24 v13, 5462, v12
        v_lshrrev_b32 v13, 16, v13
        v_mul_u32_u24 v14, 12, v13
        v_sub_u32 v12, v12, v14
        v_lshrrev_b32 v14, 1, v13
        v_and_b32 v15, 2, v14
        v_xor_b32 v12, v12, v15
        v_and_b32 v14, 1, v14
        v_and_or_b32 v14, v13, 12, v14
        v_and_b32 v13, 1, v13
        v_lshl_add_u32 v14, v13, 4, v14
        v_mul_u32_u24 v14, 1280, v14
        v_lshl_add_u32 v{112+i}, v12, 4, v14''')
    g.wv('uk7')
    for t in range(2):
        for ks in range(4): e(f'ds_read_b128 v[{64+16*t+4*ks}:{67+16*t+4*ks}], v{40+ks} offset:{256*t}')
    if p['ufl']==1: g.w0('buffer_store_dword v39, v38, s[8:11], 0 offen sc1','?fl',PO)
    g.st(4)
    if p['fw'] or p['ow']: e(f's_lshl_b32 s34, s4, 7\ns_add_u32 s34, s34, {FL+128*128}\nv_lshl_add_u32 v30, v3, 10, s34')
    e('s_cmp_ge_u32 s5, 8\ns_cbranch_scc1 LFZ')
def pref(g):
    if g.p['pu']:
        g.e(f's_mov_b32 s46, {512*8192}\ns_mov_b32 s47, 0x20000')
        for i in range(g.p['pu']): g.v(f'buffer_load_dword v{116+i}, v115, s[44:47], 0 offen offset:{64*i} {g.p["npu"]}')
def Utail(g):
    e=g.e; p=g.p; role=g.role; g.role='U'
    chk='v_xor_b32 v46, s62, v21\nv_xor_b32 v47, s62, v23\nv_xor_b32 v28, s62, v25\nv_xor_b32 v29, s62, v27\nv_or3_b32 v46, v46, v47, v28\nv_or_b32 v46, v46, v29\nv_cmp_ne_u32 vcc, 0, v46'
    ld=lambda so: f'buffer_load_dwordx4 v[20:23], v16, s[8:11], {so} offen sc1\nbuffer_load_dwordx4 v[24:27], v16, s[8:11], {so} offen offset:16 sc1'
    sp=p['ns']<10
    if sp:
        l0=ld; ld=lambda so: l0(so)+'\n'+l0(so).replace('v16','v17').replace('20:23','48:51').replace('24:27','52:55')
        chk=chk.replace('v_or_b32 v46, v46, v29','v_xor_b32 v47, s62, v49\nv_or3_b32 v46, v46, v47, v29\nv_xor_b32 v47, s62, v51\nv_xor_b32 v28, s62, v53\nv_xor_b32 v29, s62, v55\nv_or3_b32 v46, v46, v47, v28\nv_or_b32 v46, v46, v29')
    g.dual(ld,chk,'e1')
    e('ds_write2_b32 v45, v20, v22 offset0:0 offset1:1\nds_write2_b32 v45, v24, v26 offset0:2 offset1:3')
    if sp: e('v_add_u32 v45, 4096, v45\nds_write2_b32 v45, v48, v50 offset0:0 offset1:1\nds_write2_b32 v45, v52, v54 offset0:2 offset1:3')
    e('s_waitcnt lgkmcnt(0)\ns_barrier')
    n=8 if sp else 4
    for ks in range(n): e(f'ds_read_b128 v[{128+4*ks}:{131+4*ks}], v44 offset:{0x8000+1024*ks}')
    g.st(5)
    for ks in range(n):
        e(f's_waitcnt lgkmcnt({n-1-ks})')
        for t in range(2): g.mfma(48+4*t,128+4*ks,64+16*t+4*(ks&3),ks==0)
    e(f'''v_add_f32 v48, v48, v49
    v_add_f32 v50, v50, v51
    v_add_f32 v52, v52, v53
    v_add_f32 v54, v54, v55
    v_add_f32 v48, v48, v50
    v_add_f32 v52, v52, v54
    v_permlane32_swap_b32 v48, v52
    v_add_f32 v48, v48, v52
    v_mov_b32 v49, v48
    v_permlane16_swap_b32 v48, v49
    v_add_f32 v48, v48, v49
    v_mul_f32 v48, {fl(128**-0.5*math.log2(math.e))}, v48
    v_mov_b32 v49, v48
    v_permlane32_swap_b32 v48, v49
    v_cvt_pk_bf16_f32 v48, v48, v49''')
    g.v('buffer_store_dword v48, v18, s[8:11], 0 offen sc1')
    g.st(6)
    if role=='Z': pref(g)
    g.role=role

RB=0xA000
def Opart(g):
    e=g.e; p=g.p
    g.srd(24,46,0 if 'o' in p['x'] else 32*163840)
    e(f'''s_lshl_b32 s28, s4, 2
    s_add_u32 s28, s28, s3
    s_mul_i32 s31, s28, 163840
    s_mul_i32 s34, s5, 160
    s_and_b32 s97, s34, 32
    s_sub_u32 s34, s34, s97
    s_add_u32 s31, s31, s34
    s_mul_i32 s34, s3, 24576
    s_add_u32 s34, s34, {RB}
    s_mov_b32 s30, s34''')
    if p['orev']: e('s_and_b32 s99, s5, 1\ns_mul_i32 s98, s99, 12288\ns_add_u32 s34, s34, s98\ns_mul_i32 s99, s99, 81920\ns_add_u32 s31, s31, s99\ns_lshl_b32 s98, s98, 1\ns_lshl_b32 s99, s99, 1')
    for i in range(24):
        if i==p['opre']:
            Utail(g)
            if p['ow']: g.flagpoll(30,31,'ow')
        if i==p['po']: pref(g)
        e('s_mov_b32 m0, s34\ns_add_u32 s34, s34, 1024')
        g.v(f'buffer_load_dwordx4 v{112+i%3}, s[24:27], s31 offen {p["no"]} lds','wo')
        if i%3==2 and i<23: e(f's_add_u32 s31, s31, {2560 if i%6==2 else 40960-2560}')
        if i==11 and p['orev']: e('s_sub_u32 s34, s34, s98\ns_sub_u32 s31, s31, s99')
    e(f'''v_lshrrev_b32 v13, 2, v1
    v_mul_u32_u24 v13, 192, v13
    v_and_b32 v12, 3, v3
    v_lshl_add_u32 v13, v12, 3, v13
    v_add_u32 v13, s30, v13
    v_and_b32 v20, 1, v2
    v_lshlrev_b32 v20, 5, v20
    s_add_u32 s34, s97, 32
    v_xor_b32 v21, s34, v20
    v_xor_b32 v20, s97, v20
    v_add_u32 v21, v21, v13
    v_add_u32 v20, v20, v13
    s_lshl_b32 s34, s3, 5
    s_add_u32 s34, s34, s4
    s_add_u32 s34, s34, 128
    s_lshl_b32 s34, s34, 7
    s_add_u32 s34, s34, {FL}
    v_lshl_add_u32 v14, v12, 10, s34
    s_lshl_b32 s34, s28, 10
    s_add_u32 s34, s34, {CXF}
    v_lshlrev_b32 v15, 8, v3
    v_lshl_add_u32 v15, v2, 4, v15
    v_add_u32 v15, s34, v15
    s_mov_b32 s35, {CXS-CXF}
    s_lshl_b32 s34, s3, 2
    v_lshl_add_u32 v16, v3, 4, s34
    v_lshlrev_b32 v17, 5, v1
    v_lshl_add_u32 v18, v1, 2, s96''')
    if p['oc']: e('s_lshl_b32 s34, s3, 14\nv_add_u32 v18, s34, v18\ns_mov_b32 s31, 0x10000')
    g.oob(15,'v_cmp_gt_u32 vcc, 4, v3'); g.oob(18,'v_cmp_gt_u32 vcc, 40, v%d'%p['oc'])
    if p['hu']&1: hu_addr(g,48)
    if p['pfl']&2: g.flagpre(14,19)
    g.dry0('O')
    g.wv('wo')
    for ks in range(4):
        for ct in range(5):
            for eh in range(2):
                r=64+20*ks+4*ct+2*eh
                e(f'ds_read_b64_tr_b16 v[{r}:{r+1}], v{20+(ct&1)} offset:{(32*ks+16*eh)*192+64*(ct>>1)}')
    g.st(7)
    (g.flagchk if p['pfl']&2 else g.flagpoll)(14,19,'of')
    e('s_waitcnt lgkmcnt(0)')
    g.st(8)
    ld=lambda so: '\n'.join(f'buffer_load_dwordx4 v[{32+4*k}:{35+4*k}], v15, s[8:11], {so} offen offset:{64*k} sc1' for k in range(4))
    chk=g.chk(range(32,48),19)
    if p['il']&4: chk=ilv([mf(144+4*ct,32,64+4*ct,None) for ct in range(4)],chk,3)
    g.dual(ld,chk,'e4')
    if p['hu']&1: g.v('buffer_store_dword v49, v48, s[8:11], 0 offen sc1')
    g.st(9)
    g.dry1('O')
    for ks in range(4):
        for ct in range(4 if ks==0 and p['il']&4 else 0,5): g.mfma(144+4*ct,32+4*ks,64+20*ks+4*ct,ks==0)
    for ct in range(5):
        r=144+4*ct; e(f'v_add_f32 v{r}, v{r}, v{r+1}\nv_add_f32 v{r+2}, v{r+2}, v{r+3}')
    e('s_mov_b64 exec, 0xffff')
    for ct in range(5):
        r=144+4*ct; e(f'v_add_f32 v{r}, v{r}, v{r+2}\nds_write_b32 v16, v{r} offset:{0x9000+256*ct}')
    e('''s_mov_b64 exec, -1
    s_waitcnt lgkmcnt(0)
    s_barrier
    ds_read_b128 v[52:55], v17 offset:0x9000
    ds_read_b128 v[56:59], v17 offset:0x9010
    s_waitcnt lgkmcnt(1)
    v_pk_add_f32 v[52:53], v[52:53], v[54:55]
    s_waitcnt lgkmcnt(0)
    v_pk_add_f32 v[56:57], v[56:57], v[58:59]
    v_add_f32 v52, v52, v53
    v_add_f32 v56, v56, v57
    v_cvt_pk_bf16_f32 v52, v52, v56''')
    g.dry2('O')
    g.v('buffer_store_dword v52, v18, s[8:11], 0 offen sc1')
    if p['oc']: g.v('buffer_store_dword v52, v18, s[8:11], s31 offen sc1')
    g.fin()

def Fpart(g):
    e=g.e; p=g.p
    e('LFZ:\ns_cmp_ge_u32 s63, 54\ns_cbranch_scc1 LZ')
    g.vm=[None]
    n=0 if 'f' in p['x'] else 640*3456
    g.srd(16,50,n); g.srd(20,52,n); g.srd(24,54,n)
    e(f'''s_mul_i32 s31, s3, {160*3456}
    s_lshl_b32 s34, s63, 6
    s_add_u32 s31, s31, s34
    s_mul_i32 s34, s3, 20480
    s_add_u32 s34, s34, {RB}
    s_mov_b32 s30, s34
    v_lshrrev_b32 v12, 2, v1
    v_mul_u32_u24 v12, 3456, v12
    v_and_b32 v13, 3, v1
    v_lshl_add_u32 v12, v13, 4, v12''')
    if p['frev']: e(f's_and_b32 s99, s5, 1\ns_mul_i32 s98, s99, 10240\ns_add_u32 s34, s34, s98\ns_mul_i32 s99, s99, {80*3456}\ns_add_u32 s31, s31, s99\ns_lshl_b32 s98, s98, 1\ns_lshl_b32 s99, s99, 1')
    for i in range(10):
        for m in range(2):
            if 2*i+m==p['fpre']:
                Utail(g)
                if p['fw']: g.flagpoll(30,31,'fw')
            if 2*i+m==p['pff']: pref(g)
            e('s_mov_b32 m0, s34\ns_add_u32 s34, s34, 1024')
            g.v(f'buffer_load_dwordx4 v12, s[{16+4*m}:{19+4*m}], s31 offen {p["nf"]} lds','gu')
        if i<9: e(f's_add_u32 s31, s31, {16*3456}')
        if i==4 and p['frev']: e('s_sub_u32 s34, s34, s98\ns_sub_u32 s31, s31, s99')
    e(f'''v_lshrrev_b32 v17, 1, v2
    v_lshlrev_b32 v17, 11, v17
    v_and_b32 v18, 1, v2
    v_lshl_add_u32 v17, v18, 9, v17
    v_lshrrev_b32 v18, 2, v3
    v_lshl_add_u32 v17, v18, 6, v17
    v_lshl_add_u32 v17, v13, 3, v17
    v_add_u32 v17, s30, v17
    s_lshl_b32 s34, s3, 11
    s_add_u32 s34, s34, {FL}
    v_lshl_add_u32 v18, v3, 7, s34
    s_lshl_b32 s34, s3, 9
    s_add_u32 s34, s34, {OP}
    s_mul_i32 s35, s4, {16384*p['oc']}
    s_add_u32 s34, s34, s35
    v_lshl_add_u32 v20, v3, 11, s34
    v_lshl_add_u32 v20, v2, 4, v20
    v_lshrrev_b32 v21, 1, v2
    v_mul_u32_u24 v21, 96, v21
    v_add_u32 v21, v21, v20
    v_mul_u32_u24 v22, 80, v3
    s_lshl_b32 s34, s3, 4
    v_lshl_add_u32 v23, v2, 2, s34
    v_add_u32 v23, v23, v22
    v_and_b32 v24, 7, v3
    v_lshl_add_u32 v24, v2, 3, v24
    v_lshrrev_b32 v25, 3, v3
    v_lshl_add_u32 v24, v25, 5, v24
    v_mul_u32_u24 v24, 80, v24
    s_lshl_b32 s34, s3, 8
    s_add_u32 s34, s34, s96
    v_lshlrev_b32 v26, 4, v3
    v_lshl_add_u32 v26, v2, 3, v26
    s_add_u32 s35, s96, 1024
    v_add_u32 v27, s35, v26
    v_add_u32 v26, s34, v26
    v_mov_b32 v29, v6''')
    g.oob(26,'v_cmp_gt_u32 vcc, 32, v1'); g.oob(27,'v_cmp_gt_u32 vcc, 32, v0')
    if p['pfl']&1: g.flagpre(18,19)
    g.dry0('F')
    e(f'''s_mul_i32 s31, s63, {32*1280}
    v_mul_u32_u24 v14, 10240, v2
    v_lshl_add_u32 v14, v3, 4, v14
    v_add_u32 v15, 1024, v14
    s_lshl_b32 s34, s3, 8
    v_add_u32 v14, s34, v14''')
    g.oob(15,'v_cmp_gt_u32 vcc, 64, v0')
    e('s_add_u32 s33, s31, 3840\ns_add_u32 s32, s31, 7680')
    wd=lambda r,a: '\n'.join(f'buffer_load_dwordx4 v[{r+4*i}:{r+3+4*i}], v{a}, s[24:27], {["s31","s33","s32"][i//3]} offen offset:{1280*(i%3)} {p.get("nd",p["nf"])}' for i in range(8))
    g.v(wd(160,14),'wd')
    g.w0(wd(192,15),'?wd')
    e('s_mul_i32 s34, s3, 320\nv_lshl_add_u32 v16, v2, 4, s34'); g.oob(16,'v_cmp_eq_u32 vcc, 8, v3')
    for ks in range(5): g.v(f'buffer_load_dwordx4 v[{40+4*ks}:{43+4*ks}], v16, s[12:15], 0 offen offset:{64*ks}','x')
    g.wv('gu')
    for ks in range(5):
        for t in range(4):
            for eh in range(2):
                r=64+16*ks+4*t+2*eh
                e(f'ds_read_b64_tr_b16 v[{r}:{r+1}], v17 offset:{4096*ks+1024*(t>>1)+256*eh+32*(t&1)}')
    g.wv()
    e('v_mov_b32 v28, 0x3f803f80\nv_cmp_eq_u32 vcc, 12, v3')
    for r in range(40,60): e(f'v_cndmask_b32 v{r}, v{r}, v28, vcc')
    e('v_cmp_gt_u32 s[98:99], 9, v3')
    g.st(7)
    if p['hu']&2: hu_addr(g,29)
    (g.flagchk if p['pfl']&1 else g.flagpoll)(18,19,'ff')
    if p['hu']&1: e('s_and_b32 s34, s63, 7\ns_lshl_b32 s34, s34, 3\nv_add_u32 v18, s34, v1'); hupoll(g,18,19,8,'fh')
    e('s_waitcnt lgkmcnt(0)\ns_mov_b32 exec_lo, 0x00ff00ff\ns_mov_b32 exec_hi, 0x00ff00ff')
    g.st(8)
    ld='\n'.join(f'buffer_load_dwordx4 v[{40+4*k}:{43+4*k}], v{21 if k==2 else 20}, s[8:11], 0 offen offset:{[0,64,128,288,352][k]} sc1' for k in range(5))
    g.poll(ld,ilv([mf(224+4*t,40,64+4*t,None) for t in range(4)] if p['il']&8 else [],g.chk(range(40,60),19),3),BIG,'e5')
    e('s_mov_b64 exec, -1')
    hs='buffer_store_dword v30, v29, s[8:11], 0 offen sc1'
    if p['hu']&2 and p['fh']==0: g.v(hs)
    g.st(9)
    g.dry1('F')
    for ks in range(5):
        for t in range(4 if ks==0 and p['il']&8 else 0,4): g.mfma(224+4*t,40+4*ks,64+16*ks+4*t,ks==0)
        g.mfma(240,40+4*ks,40+4*ks,ks==0)
    if p['hu']&2 and p['fh']==1: g.v(hs)
    for t in range(5):
        r=224+4*t; e(f'v_add_f32 v{r}, v{r}, v{r+1}\nv_add_f32 v{r+2}, v{r+2}, v{r+3}\nv_add_f32 v{r}, v{r}, v{r+2}\nds_write_b32 v23, v{r} offset:{1280*t}')
    e('s_waitcnt lgkmcnt(0)\ns_barrier')
    if p['hu']&2 and p['fh']==2: g.v(hs)
    for w in range(4): e(f'ds_read_b128 v[{80+4*w}:{83+4*w}], v22 offset:{5120+16*w}')
    for w in range(4): e(f'ds_read_b128 v[{64+4*w}:{67+4*w}], v24 offset:{16*w}')
    def red(b):
        e(f'''v_pk_add_f32 v[{b}:{b+1}], v[{b}:{b+1}], v[{b+4}:{b+5}]
        v_pk_add_f32 v[{b+2}:{b+3}], v[{b+2}:{b+3}], v[{b+6}:{b+7}]
        v_pk_add_f32 v[{b+8}:{b+9}], v[{b+8}:{b+9}], v[{b+12}:{b+13}]
        v_pk_add_f32 v[{b+10}:{b+11}], v[{b+10}:{b+11}], v[{b+14}:{b+15}]
        v_pk_add_f32 v[{b}:{b+1}], v[{b}:{b+1}], v[{b+8}:{b+9}]
        v_pk_add_f32 v[{b+2}:{b+3}], v[{b+2}:{b+3}], v[{b+10}:{b+11}]
        v_add_f32 v{b}, v{b}, v{b+1}
        v_add_f32 v{b}, v{b}, v{b+2}''')
    e('s_waitcnt lgkmcnt(4)'); red(80)
    e('v_cndmask_b32 v81, 0, v80, s[98:99]\nv_mov_b32_dpp v82, v80 row_newbcast:12 row_mask:0xf bank_mask:0xf\ns_waitcnt lgkmcnt(0)')
    red(64)
    for c in ['row_ror:8','row_ror:4','row_ror:2','row_ror:1']: g.dpp('v_add_f32',81,81,81,c)
    k1=-2*math.log2(math.e)*math.sqrt(2/math.pi)
    e(f'''v_mul_f32 v82, {fl(1/640)}, v82
    v_mul_f32 v81, {fl(1/640)}, v81
    v_fma_f32 v64, -v82, v67, v64
    v_fma_f32 v81, -v82, v82, v81
    v_max_f32 v81, 0, v81
    v_add_f32 v81, {fl(1e-5)}, v81
    v_rsq_f32 v81, v81
    v_mov_b32 v66, {fl(k1)}
    v_mul_f32 v64, v64, v81
    v_mul_f32 v65, v64, v64
    v_fmac_f32 v66, {fl(k1*0.044715)}, v65
    v_mul_f32 v66, v66, v64
    v_exp_f32 v66, v66
    v_mul_f32_dpp v65, v64, v64 row_ror:8 row_mask:0xf bank_mask:0xf
    v_add_f32 v66, 1.0, v66
    v_rcp_f32 v66, v66
    v_mul_f32 v66, v66, v65
    v_cvt_pk_bf16_f32 v66, v66, v66''')
    for i in range(8):
        for r in range(4): g.dpp('v_and_b32',96+4*i+r,66,32+r,f'row_newbcast:{i}')
        if i: g.mfma(224,92+4*i,156+4*i,i==1); g.mfma(228,92+4*i,188+4*i,i==1)
    g.mfma(224,124,188,0); g.mfma(228,124,220,0)
    g.dry2('F')
    e('v_cvt_pk_bf16_f32 v224, v224, v225\nv_cvt_pk_bf16_f32 v225, v226, v227')
    g.v('buffer_store_dwordx2 v[224:225], v26, s[8:11], 0 offen sc1')
    e('v_cvt_pk_bf16_f32 v228, v228, v229\nv_cvt_pk_bf16_f32 v229, v230, v231')
    g.v('buffer_store_dwordx2 v[228:229], v27, s[8:11], 0 offen sc1')
    g.fin()

def Zpart(g):
    e=g.e
    e('LZ:'); g.vm=[None]
    Utail(g)
    if 'z' in g.p['x']: e('s_endpgm')
    g.srd(24,56,1280)
    e(f'''s_sub_u32 s63, s63, 54
    s_lshl_b32 s30, s63, 2
    s_add_u32 s30, s30, s3
    s_mul_i32 s31, s30, 52
    s_lshr_b32 s31, s31, 8
    s_lshl_b32 s34, s30, 5
    v_lshrrev_b32 v12, 1, v1
    v_and_b32 v13, 1, v1
    v_lshl_add_u32 v13, v13, 4, s34
    v_mul_u32_u24 v14, 1280, v12
    v_add_u32 v14, v14, v13
    v_add_u32 v14, {FP}, v14
    v_add_u32 v15, {32*1280}, v14
    s_mul_i32 s35, s31, 96
    s_add_u32 s35, s35, {OP}
    s_mul_i32 s33, s4, {16384*g.p['oc']}
    s_add_u32 s35, s35, s33
    v_lshl_add_u32 v16, v12, 11, s35
    v_add_u32 v16, v16, v13
    v_lshlrev_b32 v17, 4, v3
    v_lshl_add_u32 v17, v2, 3, v17
    v_add_u32 v17, s34, v17
    v_and_b32 v18, 0x2e, v1''')
    g.oob(17,'v_cmp_eq_u32 vcc, 0, v18'); g.oob(15,'v_cmp_gt_u32 vcc, 44, v1'); g.oob(16,'v_cmp_gt_u32 vcc, 16, v1'); g.oob(13,'v_cmp_gt_u32 vcc, 2, v1')
    g.v('buffer_load_dwordx4 v[40:43], v13, s[12:15], 0 offen')
    e(f'''v_and_b32 v19, 7, v1
    v_lshrrev_b32 v20, 3, v1
    v_lshl_add_u32 v20, v19, 3, v20
    v_add_u32 v20, 64, v20
    s_lshl_b32 s35, s31, 3
    v_add_u32 v19, s35, v19
    v_cmp_gt_u32 vcc, 54, v1
    v_cndmask_b32 v19, v19, v20, vcc
    v_lshlrev_b32 v19, 7, v19
    v_add_u32 v19, {FL}, v19
    v_mov_b32 v22, 0
    v_mov_b32 v23, s62
    s_lshl_b32 s35, s63, 8
    v_add_u32 v21, s35, v0''')
    g.oob(22,'v_cmp_eq_u32 vcc, 0, v21')
    for r in range(4): e(f'v_and_b32 v{36+r}, 0x3f803f80, v{32+r}')
    g.dry0('Z')
    if g.p['hu']&2:
        g.flagpoll(19,20,'zf')
        e('s_min_u32 s34, s63, 5\ns_lshl_b32 s34, s34, 3\ns_add_u32 s34, s34, 64\nv_add_u32 v19, s34, v1'); hupoll(g,19,20,7,'zh')
        g.st(8)
        g.mfma(56,36,40,1)
        g.poll('buffer_load_dwordx4 v[48:51], v14, s[8:11], 0 offen sc1\nbuffer_load_dwordx4 v[52:55], v15, s[8:11], 0 offen sc1\nbuffer_load_dwordx4 v[44:47], v16, s[8:11], 0 offen sc1',g.chk(range(44,56),20),BIG,'e6')
        g.mfma(56,36,44,0)
    else:
        if g.p['hu']&1:
            g.flagpoll(19,20,'zf')
            e('v_mov_b32 v19, v1'); hupoll(g,19,20,8,'zh')
        else: g.flagpoll(19,20,'zf')
        g.mfma(56,36,40,1)
        g.st(7)
        g.poll('buffer_load_dwordx4 v[44:47], v16, s[8:11], 0 offen sc1',g.chk(range(44,48),20),BIG,'e5z')
        g.mfma(56,36,44,0)
        g.st(8)
        g.poll('buffer_load_dwordx4 v[48:51], v14, s[8:11], 0 offen sc1\nbuffer_load_dwordx4 v[52:55], v15, s[8:11], 0 offen sc1',ilv([mf(60,36,48,56),mf(60,36,52,60)] if g.p['il']&16 else [],g.chk(range(48,56),20),3),BIG,'e6')
    g.st(9)
    g.dry1('Z')
    if not g.p['il']&16: e(mf(60,36,48,56)+'\n'+mf(60,36,52,60))
    for c in ['row_ror:8','row_ror:4','row_ror:2']:
        for r in range(4): g.dpp('v_add_f32',(56 if c[-1]=='2' else 60)+r,60+r,60+r,c)
    e('v_cvt_pk_bf16_f32 v56, v56, v57\nv_cvt_pk_bf16_f32 v57, v58, v59')
    g.dry2('Z')
    g.v('buffer_store_dwordx2 v[56:57], v17, s[24:27], 0 offen\nbuffer_store_dword v23, v22, s[8:11], 0 offen sc1')
    g.fin()

def ff(k): return ((k&7)<<1)|(k>>3)
QL=0x20000; PL=0x24000; ML=0x25000; SL=0x25100
def Tpart(g):
    e=g.e; p=g.p
    e('LT:' if p['tf'] else '.p2align 6\nLT:'); g.vm=[None]
    e('s_lshl_b32 s101, s29, 2\ns_add_u32 s101, s101, s3')
    e('s_and_b32 s98, s5, 15\ns_lshl_b32 s99, s4, 2\ns_add_u32 s99, s99, s3' if p['qm'] else 's_mov_b32 s98, s101\ns_mov_b32 s99, s28')
    e(f"""v_mul_u32_u24 v108, 20, v1
    s_mul_i32 s97, s98, {40*8192}
    s_lshl_b32 s35, s99, 8
    s_add_u32 s97, s97, s35
    v_mul_u32_u24 v109, 81920, v2
    v_lshl_add_u32 v109, v3, 4, v109
    s_bfe_u32 s30, s2, 0x30004
    s_lshl_b32 s34, s4, 3
    s_add_u32 s30, s30, s34
    s_lshl_b32 s32, s30, 17
    s_lshl_b32 s96, s3, 15
    s_and_b32 s31, s5, 1
    s_lshl_b32 s34, s31, 14
    s_add_u32 s96, s96, {'s34' if p['rev'] else 0}
    s_add_u32 s32, s32, s96
    s_mov_b32 s100, s96
    v_lshlrev_b32 v16, 4, v1
    s_mov_b32 s14, 1280
    s_mov_b32 s15, 0x20000
    s_mov_b32 s18, {8192*1024}
    s_mov_b32 s19, 0x20000
    s_mov_b32 s22, {640*8192}
    s_mov_b32 s23, 0x20000
    s_lshl_b32 s63, s28, 2
    s_add_u32 s63, s63, s29
    s_lshl_b32 s34, s63, 8
    s_add_u32 s34, s34, {CXF}
    v_lshl_add_u32 v111, v3, 4, s34
    v_mul_u32_u24 v36, {CXS-CXF}, v2
    v_add_u32 v111, v111, v36
    s_lshl_b32 s35, s3, 6
    s_add_u32 s34, s34, s35
    v_lshl_add_u32 v13, v3, 2, s34""")
    g.oob(111,'v_cmp_gt_u32 vcc, 32, v1')
    for k in range(1,16): e(f'v_xor_b32 v{16+k}, {16*ff(k)}, v16')
    e('s_waitcnt lgkmcnt(0)')
    g.st(10)
    e('s_load_dword s62, s[60:61], 0\ns_mov_b32 s12, s36\ns_mov_b32 s13, s37\ns_mov_b32 s20, s40\ns_mov_b32 s21, s41')
    g.v('buffer_load_dwordx4 v[72:75], v108, s[12:15], 0 offen\nbuffer_load_dword v76, v108, s[12:15], 0 offen offset:16','x')
    for i in range(p['ns']):
        g.v(f'buffer_load_dwordx4 v[{128+4*i}:{131+4*i}], v109, s[20:23], s97 offen {p["nq"]}',f'q{i}')
        if i<9: e('s_add_u32 s97, s97, 8192')
    e('s_mov_b32 s16, s38\ns_mov_b32 s17, s39\ns_mov_b32 s8, s60\ns_mov_b32 s9, s61')
    so=['0','s24','s25','s26']
    fld='buffer_load_dword v7, v14, s[8:11], 0 offen sc1'
    nd=[0]
    def dma(n):
        for _ in range(n):
            k=nd[0]
            if k>=32: return
            nd[0]+=1
            if k%4==0: e('s_mov_b32 m0, s100\ns_add_u32 s100, s100, 4096')
            if k>=p['cwin']: g.wv(f'c{k-p["cwin"]}')
            g.v(f'buffer_load_dwordx4 v{16+k%16}, s[16:19], s32 offen offset:{1024*(k%4)} {p["nc"] if k<16 else p.get("nc2",p["nc"])} lds',f'c{k}')
            if k%4==3: e('s_add_u32 s32, s32, 4096')
            if k==15 and p['rev']: e('s_lshl_b32 s33, s31, 15\ns_sub_u32 s32, s32, s33\ns_sub_u32 s100, s100, s33')
            if k==p['fi']: g.v(fld,'f')
    g.w0('buffer_store_dwordx4 v[8:11], v111, s[8:11], 0 offen sc1','?po')
    dma(p['d0'])
    if p['tw']&2:
        g.srd(24,44,512*8192); e('v_lshlrev_b32 v36, 14, v1\ns_lshl_b32 s34, s29, 20')
        g.w0('buffer_load_dword v254, v36, s[24:27], s34 offen','?tw')
    def pois(k):
        if p['tpo']==k:
            for r in range(4):
                if r: e(f'v_xor_b32 v36, {1024*r*p["sw"]}, v12')
                g.v(f'buffer_store_dwordx4 v[8:11], v{36 if r else 12}, s[8:11], {so[r]} offen sc1','po')
    g.masks(32,36)
    e(f"""s_lshl_b32 s34, s99, 14
    s_lshl_b32 s35, s98, 9
    s_add_u32 s34, s34, s35
    s_add_u32 s34, s34, {Q1F}
    v_lshlrev_b32 v110, 5, v3
    v_lshl_add_u32 v110, v2, 4, v110
    v_add_u32 v110, s34, v110
    s_lshl_b32 s34, s98, 4
    v_lshl_add_u32 v108, v2, 2, s34
    s_lshl_b32 s35, s31, 2
    s_add_u32 s35, s35, s3
    s_lshl_b32 s97, s35, 7
    s_add_u32 s97, s97, {FL}
    v_lshl_add_u32 v14, v3, 10, s97
    s_lshl_b32 s35, s35, 12
    s_add_u32 s35, s35, {QA}
    v_add_u32 v15, s35, v16
    v_mov_b32 v94, 0x3f803f80
    s_mov_b32 s27, {Q1S-Q1F}""")
    g.oob(110,'v_cmp_gt_u32 vcc, 32, v1')
    if p['dty']&1: g.v('buffer_store_dwordx4 v[8:11], v110, s[8:11], 0 offen')
    g.oob(111,'v_cmp_gt_u32 vcc, 16, v1')
    tfl=('buffer_store_dwordx4 v[8:11], v111, s[8:11], 0 offen\n' if p['dty']&2 else '')+'buffer_store_dword v39, v38, s[8:11], 0 offen sc1'
    e('s_waitcnt lgkmcnt(0)\ns_add_u32 s62, s62, 1')
    own_flag(g,38)
    lnp1(g,range(p['ns']),dma,'s27')
    g.st(13)
    if p['tfl']==0: g.w0(tfl,'?fl','?po')
    dma(p['d2'])
    if p['bq']: e('s_barrier')
    e(f"""s_lshl_b32 s34, s31, 20
    s_lshl_b32 s35, s3, 14
    s_add_u32 s34, s34, s35
    s_lshl_b32 s35, s30, 8
    s_add_u32 s34, s34, s35
    s_add_u32 s34, s34, {CC}
    v_lshl_add_u32 v12, v3, 4, s34
    v_lshl_add_u32 v12, v2, 18, v12
    s_lshl_b32 s35, s3, 8
    v_lshl_add_u32 v36, v2, 12, s35
    v_and_b32 v36, {0x3f00 if p['sw'] else 0}, v36
    v_xor_b32 v12, v12, v36
    s_mov_b32 s24, 0x10000
    s_mov_b32 s25, 0x20000
    s_mov_b32 s26, 0x30000
    s_mov_b32 s27, {CXS-CXF}""")
    g.oob(13,'v_cmp_gt_u32 vcc, 16, v1')
    pois(0)
    g.srd(20,44,0 if 'v' in p['x'] else 512*8192)
    e(f"""v_and_b32 v4, 7, v3
    v_lshrrev_b32 v36, 3, v3
    v_lshl_or_b32 v4, v4, 1, v36
    v_lshlrev_b32 v36, 1, v2
    v_xor_b32 v36, v36, v4
    v_lshlrev_b32 v36, 4, v36
    v_lshl_add_u32 v36, v3, 10, v36
    v_add_u32 v40, s96, v36
    v_add_u32 v44, {QL}, v36""")
    dma(2)
    for m in range(1,4): e(f'v_xor_b32 v{40+m}, {(m>>1)*128+(m&1)*16}, v40\nv_xor_b32 v{44+m}, {(m>>1)*128+(m&1)*16}, v44')
    dma(2)
    e(f"""v_lshrrev_b32 v36, 2, v1
    v_and_b32 v37, 7, v36
    v_lshrrev_b32 v64, 5, v1
    v_lshl_or_b32 v37, v37, 1, v64
    v_bfe_u32 v64, v1, 1, 1
    v_xor_b32 v37, v37, v64
    v_lshlrev_b32 v37, 4, v37
    v_lshl_add_u32 v37, v36, 10, v37
    v_and_b32 v64, 1, v1
    v_lshl_add_u32 v37, v64, 3, v37
    s_lshl_b32 s35, s3, 8
    s_and_b32 s34, s96, 0x4000
    s_add_u32 s35, s35, s34
    v_add_u32 v48, s35, v37""")
    dma(2)
    for ct in range(1,8): e(f'v_xor_b32 v{48+ct}, {32*ct}, v48')
    dma(2)
    for ct in range(8): e(f'v_add_u32 v{56+ct}, 0x10000, v{48+ct}')
    dma(2)
    e(f"""s_and_b32 s35, s3, 1
    s_lshl_b32 s35, s35, 7
    s_lshr_b32 s97, s3, 1
    s_lshl_b32 s97, s97, 4
    s_or_b32 s35, s35, s97
    v_xor_b32 v68, s35, v16
    s_lshl_b32 s35, s3, 12
    s_add_u32 s35, s35, {QL}
    v_add_u32 v68, s35, v68""")
    for i in range(1,4): e(f'v_xor_b32 v{68+i}, {32*i}, v68')
    e(f"""s_lshl_b32 s101, s101, 18
    s_lshl_b32 s35, s28, 8
    s_add_u32 s101, s101, s35
    v_lshlrev_b32 v5, 4, v3
    v_lshl_add_u32 v4, v2, 13, v5""")
    def uv(i):
        g.v(f'buffer_load_dwordx4 a[{128+4*i}:{131+4*i}], v4, s[20:23], s101 offen {p["nuv"]}','uv')
        if i<7: e('s_add_u32 s101, s101, 32768')
    dma(32)
    g.st(1)
    pois(1)
    if p['uvat']==0:
        for i in range(8): uv(i)
    ld=lambda so: '\n'.join(f'buffer_load_dwordx4 v[{72+4*i}:{75+4*i}], v{so}, s[8:11], 0 offen offset:{1024*i} sc1' for i in range(4))
    def gath():
        g.wv(f'c{p["gat"]}'); g.wv('f')
        e(f'v_cmp_ne_u32 vcc, s62, v7\ns_cmp_eq_u64 vcc, 0\ns_cselect_b32 s35, 0, {OOB}\nv_or_b32 v18, s35, v15')
        g.v(ld(18)+'\n'+fld,'g')
        g.st(14)
    if p['gat']<15: gath()
    g.wv('c15')
    for m in range(16): e(f'ds_read_b128 v[{128+4*m}:{131+4*m}], v{40+(m&3)} offset:{256*(m>>2)}')
    def trs(t): return [f'ds_read_b64_tr_b16 a[{32*ks+4*ct+2*t}:{32*ks+4*ct+2*t+1}], v{48+ct+8*(ks>>1)} offset:{32768*(ks&1)}' for ks in range(4) for ct in range(8)]
    e('s_barrier')
    if p['tfl']==1: g.w0(tfl,'?fl','?po')
    for x in trs(0): e(x)
    for m in list(range(40,44))+list(range(48,64)): e(f'v_xor_b32 v{m}, 0x4000, v{m}')
    if p['fi']>31: g.wv(f'c{p["fi"]-32}'); g.v(fld,'f')
    if 15<=p['gat']<31: gath()
    g.wv('c31')
    g.st(2)
    for m in range(16): e(f'ds_read_b128 v[{192+4*m}:{195+4*m}], v{40+(m&3)} offset:{256*(m>>2)}')
    if p['gat']==31: gath()
    if p['uvat']==2:
        for i in range(8): uv(i)
    pois(2)
    g.wv('g')
    chk=g.chk(range(72,88),17)
    lf=g.L('t'); lg=g.L('t'); ok=g.L('t')
    e(f's_cmp_lg_u32 s35, 0\ns_cbranch_scc1 {lf}\n'+chk+f'\ns_cbranch_vccnz {lg}\n{ok}:')
    sv=list(g.vm); so_=g.o; g.o=[]
    e(f'{lf}:\nv_cmp_ne_u32 vcc, s62, v7\ns_cbranch_vccz {lg}')
    g.flagpoll(14,7,'tf')
    e(f'{lg}:')
    g.st(3)
    g.poll(ld(15),chk,BIG,'e2')
    e(f's_branch {ok}'); g.vm=sv; g.tail.append('\n'.join(g.o)); g.o=so_
    g.st(9)
    for i in range(4): e(f'ds_write_b128 v{68+i}, v[{72+4*i}:{75+4*i}] offset:{1024*i}')
    pois(3)
    if p['uvat']==3:
        for i in range(8): uv(i)
    e('v_mov_b32 v17, v5\ns_waitcnt lgkmcnt(0)\ns_barrier')
    g.st(4)
    for m in range(16): e(f'ds_read_b128 v[{64+4*m}:{67+4*m}], v{44+(m&3)} offset:{256*(m>>2)}')
    fill=f'''s_lshl_b32 s34, s31, {8 if p['ms'] else 6}
    s_add_u32 s34, s34, s30
    s_lshl_b32 s34, s34, 7
    s_add_u32 s34, s34, {MS}
    v_lshl_add_u32 v19, v3, 3, s34
    v_lshrrev_b32 v36, 2, v3
    v_mul_u32_u24 v36, {8192-32 if p['ms'] else 0}, v36
    v_add_u32 v19, v19, v36
    v_cmp_gt_u32 vcc, 16, v0
    v_cndmask_b32 v19, v6, v19, vcc
    s_lshl_b32 s34, s3, 2
    v_add_u32 v20, {ML}, v17
    v_add_u32 v21, s34, v20
    v_add_u32 v22, {PL}, v16
    s_lshl_b32 s34, s3, 10
    v_add_u32 v23, s34, v22
    v_mov_b32 v25, s62
    v_mov_b32 v27, s62
    v_mov_b32 v28, 0x3f803f80
    v_mov_b32 v29, 0x3f803f80
    v_mov_b32 v30, 0x3f803f80
    v_mov_b32 v31, 0x3f803f80
    s_lshr_b32 s34, s28, {2 if p['ms'] else 4}
    s_lshl_b32 s34, s34, 2
    s_add_u32 s34, s34, s3
    s_lshl_b32 s34, s34, 11
    s_and_b32 s35, s28, {3 if p['ms'] else 15}
    s_lshl_b32 s35, s35, 3
    s_add_u32 s34, s34, s35
    s_add_u32 s34, s34, {MS}
    v_and_b32 v36, 3, v3
    v_lshl_add_u32 v37, v2, 2, v36
    v_lshl_add_u32 v14, v37, 7, s34
    s_and_b32 s35, s63, {63*p['sw']}
    s_lshl_b32 s35, s35, 7
    v_xor_b32 v14, s35, v14
    s_lshl_b32 s34, s63, 14
    s_lshl_b32 s35, s3, 12
    s_add_u32 s34, s34, s35
    s_add_u32 s34, s34, {CC}
    v_lshl_add_u32 v15, v2, 10, s34
    v_add_u32 v15, v15, v17
    s_mov_b32 s97, {LS-MS}'''.split('\n')
    if p['pv']: fill+=['v_and_b32 v12, 0xfff0ff0f, v12','v_lshl_add_u32 v12, v3, 16, v12','v_lshl_add_u32 v12, v2, 4, v12']
    SC=8; tr=trs(1)
    for m in range(16):
        e('s_waitcnt lgkmcnt(15)')
        for t in range(2): g.mfma([8,40][t],128+64*t+4*m,64+4*m,m==0)
        e(tr.pop(0))
        for _ in range(3):
            if fill: e(fill.pop(0))
        if p['uvat']==1 and m&1: uv(m>>1)
    assert not fill
    e(tr.pop(0))
    e('v_max3_f32 v24, v8, v9, v10\nv_max3_f32 v36, v40, v41, v42\nv_max3_f32 v24, v24, v11, v43\nv_max_f32 v24, v24, v36')
    g.allg('v_max_f32',24,36)
    if p['g1']:
        e('v_ceil_f32 v24, v24')
        for r in range(8): e(f'v_sub_f32 v{68+r}, v{[8,9,10,11,40,41,42,43][r]}, v24')
        e('v_mul_f32 v24, 0x43000000, v24\nds_write_b32 v21, v24')
        for r in range(8):
            e(f'v_exp_f32 v{68+r}, v{68+r}')
            for _ in range(2):
                if tr: e(tr.pop(0))
        for r in range(4): e(f'v_cvt_pk_bf16_f32 v{64+r}, v{68+2*r}, v{69+2*r}')
        e('ds_write_b128 v23, v[64:67]')
        if p['tpo']<4: g.wv('po')
        e('s_waitcnt lgkmcnt(0)\ns_barrier')
    else:
        e('ds_write_b32 v21, v24')
        if 'p' not in p['x'] and p['tpo']<4: g.wv('po')
        e('s_waitcnt lgkmcnt(0)\ns_barrier\nds_read_b128 v[44:47], v20')
        for x in tr: e(x)
        e('s_waitcnt lgkmcnt(15)\nv_max3_f32 v24, v44, v45, v46\nv_max_f32 v24, v24, v47')
        g.v('buffer_store_dwordx2 v[24:25], v19, s[8:11], 0 offen sc1')
        SC=68
        for r in range(8): e(f'v_sub_f32 v{SC+r}, v{[8,9,10,11,40,41,42,43][r]}, v24')
        for r in range(8): e(f'v_exp_f32 v{SC+r}, v{SC+r}')
        for r in range(4): e(f'v_cvt_pk_bf16_f32 v{64+r}, v{SC+2*r}, v{SC+1+2*r}')
        e('ds_write_b128 v23, v[64:67]\ns_waitcnt lgkmcnt(0)\ns_barrier')
    g.st(5)
    if p['g1']: e('ds_read_b128 v[116:119], v20')
    for ks in range(4): e(f'ds_read_b128 v[{96+4*ks}:{99+4*ks}], v22 offset:{1024*ks}')
    sub=lambda ks: [f'v_pk_sub_u16 v{96+4*ks+r}, v{96+4*ks+r}, v{120+(ks>>1)} op_sel:[0,{ks&1}] op_sel_hi:[1,{ks&1}] clamp' for r in range(4)]
    dl=lambda k: [f'v_sub_f32 v{116+k}, v24, v{116+k}',f'v_sub_f32 v{117+k}, v24, v{117+k}',f'v_cvt_u32_f32 v{116+k}, v{116+k}',f'v_cvt_u32_f32 v{117+k}, v{117+k}',f'v_cvt_pk_u16_u32 v{120+(k>>1)}, v{116+k}, v{117+k}']
    if p['g1']: e('s_waitcnt lgkmcnt(4)\nv_max3_f32 v24, v116, v117, v118\nv_max_f32 v24, v24, v119\n'+'\n'.join(dl(0))+'\ns_waitcnt lgkmcnt(3)\n'+'\n'.join(sub(0)))
    fill=f'''v_and_b32 v36, 1, v2
    s_and_b32 s34, s3, 1
    s_lshl_b32 s34, s34, 7
    {'v_lshlrev_b32 v37, 6, v2' if p['pv'] else 'v_lshl_or_b32 v37, v36, 5, s34'}
    v_xor_b32 v37, v37, v17
    v_lshl_add_u32 v37, v2, 8, v37
    s_lshl_b32 s34, s3, 13
    v_add_u32 v40, s34, v37
    v_xor_b32 v41, {32 if p['pv'] else 64}, v40
    v_lshrrev_b32 v37, 2, v3
    v_lshl_add_u32 v36, v37, 1, v36
    v_lshlrev_b32 v36, 5, v36
    s_lshl_b32 s34, s3, 6
    v_xor_b32 v36, s34, v36
    v_and_b32 v38, 3, v3
    v_lshl_add_u32 v36, v38, 3, v36
    v_lshl_add_u32 v36, v2, {10 if p['pv'] else 8}, v36
    v_lshl_add_u32 v42, v37, {8 if p['pv'] else 12}, v36
    v_xor_b32 v43, 32, v42
    s_lshl_b32 s34, s3, 8
    s_add_u32 s34, s34, {SL}
    v_and_b32 v36, 1, v2
    v_lshl_add_u32 v36, v36, 3, v17
    v_add_u32 v44, s34, v36
    v_lshlrev_b32 v45, 8, v38
    v_lshl_add_u32 v45, v2, 4, v45
    v_add_u32 v45, {SL}, v45
    s_lshl_b32 s34, s3, 2
    s_add_u32 s34, s34, {SL+1024}
    v_mov_b32 v46, s34
    v_mov_b32 v47, {SL+1024}'''.split('\n')
    msl='buffer_load_dwordx2 v[48:49], v14, s[8:11], 0 offen sc1'; msc='v_cmp_ne_u32 vcc, s62, v49'
    def ccs(k):
        for c in range(4): e(f'v_cvt_pk_bf16_f32 v{128+4*k+c}, v{64+8*k+2*c}, v{65+8*k+2*c}')
        g.v(f'buffer_store_dwordx4 v[{128+4*k}:{131+4*k}], v12, s[8:11], 0 offen offset:{64*k} sc1')
        if k==0: e('v_mov_b32 v26, v112'); g.v('buffer_store_dwordx2 v[26:27], v19, s[8:11], s97 offen sc1')
    if p['pv']:
        for k in range(4):
            for ks in range(4):
                if k==0: e(f's_waitcnt lgkmcnt({3-ks})'); g.mfma(112,28,96+4*ks,ks==0)
                for t in range(2):
                    g.mfma(64+8*k+4*t,32*ks+8*k+4*t,96+4*ks,ks==0,ak='a')
                    if ks!=1:
                        for _ in range(2):
                            if fill: e(fill.pop(0))
                if k and ks==0: ccs(k-1)
        ccs(3)
        assert not fill
    else:
        for ks in range(4):
            if not p['g1']: e(f's_waitcnt lgkmcnt({3-ks})')
            elif ks<3: fill[0:0]=(dl(2)+['v_mul_f32 v24, 0x3c000000, v24'] if ks==0 else [])+[f's_waitcnt lgkmcnt({2-ks})']+sub(ks+1)
            g.mfma(112,28,96+4*ks,ks==0)
            if p['g1'] and ks==1: g.v('buffer_store_dwordx2 v[24:25], v19, s[8:11], 0 offen sc1')
            for ct in range(8):
                g.mfma(64+4*ct,96+4*ks,32*ks+4*ct,ks==0,bk='a')
                for _ in range(2):
                    if fill: e(fill.pop(0))
        assert not fill
        if p['me']==3: g.v(msl,'ms')
        e('v_mov_b32 v26, v112')
        for r in range(4):
            for c in range(4): e(f'v_cvt_pk_bf16_f32 v{128+4*r+c}, v{64+8*c+r}, v{68+8*c+r}')
            if r: e(f'v_xor_b32 v36, {1024*r*p["sw"]}, v12')
            g.v(f'buffer_store_dwordx4 v[{128+4*r}:{131+4*r}], v{36 if r else 12}, s[8:11], {so[r]} offen {p["csc"].replace("_"," ")}')
            if r==0: g.v('buffer_store_dwordx2 v[26:27], v19, s[8:11], s97 offen sc1')
    g.st(6)
    if p['me']==1: g.v(msl)
    g.wv('uv')
    if p['me']==2: g.v(msl)
    for i in range(8): e(f'ds_write_b128 v{40+(i&1 if p["pv"] else i>>2)}, a[{128+4*i}:{131+4*i}] offset:{1024*i}')
    e('s_waitcnt lgkmcnt(0)\ns_barrier')
    for ks in range(4):
        for dt in range(2):
            for eh in range(2):
                r=160+8*ks+4*dt+2*eh
                e(f'ds_read_b64_tr_b16 v[{r}:{r+1}], v{42+dt} offset:{4096*eh+8192*ks if p["pv"] else 16384*eh+1024*ks}')
    l=g.L('me')
    if p['me']: g.wv('ms' if p['me']==3 else None); e(msc+f'\ns_cbranch_vccz {l}')
    g.poll(msl,msc,BIG,'e3s'); e(f'{l}:')
    g.st(7)
    a=g.L('e3'); b=g.L('e3')
    e(f's_mov_b32 s33, {BIG}\n{a}:\ns_sub_u32 s33, s33, 1\ns_cbranch_scc1 {b}')
    for i in range(4): g.v(f'buffer_load_dwordx4 v[{64+4*i}:{67+4*i}], v15, s[8:11], 0 offen offset:{256*i} sc1')
    g.v('buffer_load_dwordx2 v[50:51], v14, s[8:11], s97 offen sc1')
    g.dpp('v_max_f32',52,48,48,'quad_perm:[1,0,3,2]'); g.dpp('v_max_f32',52,52,52,'quad_perm:[2,3,0,1]')
    g.allg('v_max_f32',52,36)
    e('v_sub_f32 v53, v48, v52\nv_exp_f32 v53, v53\nv_cvt_pk_bf16_f32 v53, v53, v53')
    for i in range(4):
        for r in range(4): g.dpp('v_and_b32',80+4*i+r,53,32+r,f'row_newbcast:{i}')
    e('v_and_b32 v53, 0xffff0000, v53')
    g.wv()
    m3=[mf(56+4*(i&1),80+4*i,64+4*i,None if i<2 else 56+4*(i&1)) for i in range(4)]
    e(ilv(m3 if p['il']&1 else [],'v_cmp_ne_u32 s[98:99], s62, v51\n'+g.chk(range(64,80),7)+'\ns_or_b64 vcc, vcc, s[98:99]',3))
    e(f's_cbranch_vccnz {a}\n{b}:')
    g.st(8)
    if not p['il']&1: e('\n'.join(m3))
    e('v_mul_f32 v53, v53, v50')
    g.dpp('v_add_f32',53,53,53,'quad_perm:[1,0,3,2]'); g.dpp('v_add_f32',53,53,53,'quad_perm:[2,3,0,1]')
    g.allg('v_add_f32',53,36)
    e('''ds_write2_b32 v46, v52, v53 offset0:0 offset1:4
    v_pk_add_f32 v[56:57], v[56:57], v[60:61]
    v_pk_add_f32 v[58:59], v[58:59], v[62:63]
    v_cvt_pk_bf16_f32 v56, v56, v57
    v_cvt_pk_bf16_f32 v57, v58, v59
    ds_write_b64 v44, v[56:57]
    s_waitcnt lgkmcnt(0)
    s_barrier''')
    if p['il']&2:
        e('ds_read_b128 v[64:67], v45\nds_read_b128 v[80:83], v47\nds_read_b128 v[68:71], v45 offset:64\nds_read_b128 v[84:87], v47 offset:16\nds_read_b128 v[72:75], v45 offset:128\nds_read_b128 v[76:79], v45 offset:192')
        W=['s_waitcnt lgkmcnt(5)\n','','s_waitcnt lgkmcnt(3)\n','','s_waitcnt lgkmcnt(1)\n','','s_waitcnt lgkmcnt(0)\n','']
        m=[W[2*ks+dt]+mf(56+4*dt,64+4*ks,160+8*ks+4*dt,56+4*dt if ks else None) for ks in range(4) for dt in range(2)]
        c=['s_waitcnt lgkmcnt(4)\nv_max3_f32 v52, v80, v81, v82','v_max_f32 v52, v52, v83\nv_sub_f32 v80, v80, v52\nv_sub_f32 v81, v81, v52',
           'v_exp_f32 v80, v80\nv_sub_f32 v82, v82, v52','v_exp_f32 v81, v81\nv_sub_f32 v83, v83, v52','v_exp_f32 v82, v82\nv_mul_f32 v53, v80, v84','v_exp_f32 v83, v83\nv_fmac_f32 v53, v81, v85',
           'v_fmac_f32 v53, v82, v86\nv_fmac_f32 v53, v83, v87','v_rcp_f32 v53, v53']
        for x,y in zip(m,c): e(x); e(y)
        e('''v_pk_mul_f32 v[56:57], v[56:57], v[80:81]
        v_pk_fma_f32 v[56:57], v[58:59], v[82:83], v[56:57]
        v_pk_mul_f32 v[60:61], v[60:61], v[80:81]
        v_add_f32 v54, v56, v57
        v_pk_fma_f32 v[60:61], v[62:63], v[82:83], v[60:61]
        v_mul_f32 v54, v54, v53
        v_add_f32 v55, v60, v61
        v_mul_f32 v55, v55, v53
        v_cvt_pk_bf16_f32 v54, v54, v55''')
    else:
        for ks in range(4): e(f'ds_read_b128 v[{64+4*ks}:{67+4*ks}], v45 offset:{64*ks}')
        e('ds_read_b128 v[80:83], v47\nds_read_b128 v[84:87], v47 offset:16')
        for ks in range(4):
            e(f's_waitcnt lgkmcnt({5-ks})')
            for dt in range(2): g.mfma(56+4*dt,64+4*ks,160+8*ks+4*dt,ks==0)
        e('s_waitcnt lgkmcnt(0)\nv_max3_f32 v52, v80, v81, v82\nv_max_f32 v52, v52, v83')
        for r in range(4): e(f'v_sub_f32 v{80+r}, v{80+r}, v52')
        for r in range(4): e(f'v_exp_f32 v{80+r}, v{80+r}')
        e('v_mul_f32 v53, v80, v84\nv_fmac_f32 v53, v81, v85\nv_fmac_f32 v53, v82, v86\nv_fmac_f32 v53, v83, v87\nv_rcp_f32 v53, v53')
        e('v_mul_f32 v54, v80, v56\nv_mul_f32 v55, v80, v60')
        for r in range(1,4): e(f'v_fmac_f32 v54, v{80+r}, v{56+r}\nv_fmac_f32 v55, v{80+r}, v{60+r}')
        e('v_mul_f32 v54, v54, v53\nv_mul_f32 v55, v55, v53\nv_cvt_pk_bf16_f32 v54, v54, v55')
    g.v('buffer_store_dword v54, v13, s[8:11], 0 offen '+p.get('fsc','')+'\nbuffer_store_dword v54, v13, s[8:11], s27 offen sc1')
    g.fin()

def gen(**kw):
    g=G(**kw)
    pre(g)
    for r in ('TUOFZ' if g.p['tf'] else 'UOFZT'): g.role=r; globals()[r+'part'](g)
    body=fix('\n'.join(g.o))
    ref=open(f'cdna_kernels/{NAME}.s.ref').read()
    a,b=ref.split(f'{NAME}_kernel:\n'); b=b[b.index('s_endpgm'):]
    a=a.replace('grid=(3,1,1) block=(256,1,1) lds=0',f'grid=(256,1,1) block=(256,1,1) lds={LDS}')
    b=b.replace('next_free_vgpr 256','next_free_vgpr 512')
    return a+f'{NAME}_kernel:\n'+body+'\nLEND:\n'+b
if __name__=='__main__':
    kw={}
    for x in sys.argv[2:]:
        k,v=x.split('='); kw[k]=int(v) if v.lstrip('-').isdigit() else v
    open(sys.argv[1],'w').write(gen(**kw))
```
